```python
import torch

def _softmax(x, axis=-1):
    return torch.softmax(x, dim=axis)
def _gelu(x):
    return torch.nn.functional.gelu(x, approximate="tanh")
def _silu(x):
    return torch.nn.functional.silu(x)
def _sigmoid(x):
    return torch.sigmoid(x)
def _layernorm(x, axis=-1, eps=1e-5):
    m = x.mean(dim=axis, keepdim=True)
    v = x.var(dim=axis, keepdim=True, unbiased=False)
    return (x - m) / torch.sqrt(v + eps)
def _scatter_add(tgt, idx, src, axis=0):
    return tgt.clone().index_add_(axis, idx, src)
def _segment_sum(src, seg, n):
    out = torch.zeros((n,) + src.shape[1:], dtype=src.dtype)
    return out.index_add_(0, seg, src)
def _pad(x, pw):
    flat = tuple(v for pair in reversed(pw) for v in pair)
    return torch.nn.functional.pad(x, flat)

kernel_name = 'standalone__cheap_equivariant_egnn__graph'

def setup_inputs():

    _w = (lambda a: (lambda t: t.to(torch.bfloat16) if t.is_floating_point() else t)(torch.as_tensor(a)))
    N, deg, D, De = 10000, 64, 64, max(16, 1)
    E = N * deg
    return {
        "h": _w((lambda *s: torch.randn(*s, dtype=torch.bfloat16) * 0.1)(N, D)),
        "pos": _w((lambda *s: torch.randn(*s, dtype=torch.bfloat16) * 0.8)(N, 3)),
        "e_attr": _w((lambda *s: torch.randn(*s, dtype=torch.bfloat16) * 0.8)(E, De)),
        "src": _w((lambda lo, hi, *s: torch.randint(lo, hi, s))(0, N, E).to(torch.int64)),
        "dst": _w((lambda lo, hi, *s: torch.randint(lo, hi, s))(0, N, E).to(torch.int64)),
        "w_e": _w(0.1 * (lambda *s: torch.randn(*s, dtype=torch.bfloat16) * 0.8)(2 * D + 1 + De, D)),
        "w_x": _w(0.1 * (lambda *s: torch.randn(*s, dtype=torch.bfloat16) * 0.1)(D, 1)),
        "w_h": _w(0.1 * (lambda *s: torch.randn(*s, dtype=torch.bfloat16) * 0.1)(2 * D, D)),
    }

def reference(h, pos, e_attr, src, dst, w_e, w_x, w_h):
    N, D = h.shape[0], h.shape[1]
    diff = pos[dst] - pos[src]
    dist2 = torch.sum(diff * diff, axis=-1, keepdims=True)
    e_in = torch.concatenate([h[dst], h[src], dist2, e_attr], axis=-1)
    m_ij = _silu(e_in @ w_e)
    coord_scale = m_ij @ w_x
    pos_new = pos + _segment_sum(diff * coord_scale, dst, N)
    m_i = _segment_sum(m_ij, dst, N)
    h_new = h + _silu(torch.concatenate([h, m_i], axis=-1) @ w_h)
    return h_new, pos_new
```

```python
import re


class Asm:
    def __init__(self):
        self.lines = []

    def __call__(self, s=""):
        for ln in s.split("\n"):
            ln = ln.strip()
            if ln:
                self.lines.append(ln)

    def label(self, name):
        self.lines.append(name + ":")

    def raw(self, s):
        self.lines.append(s)

    def text(self):
        out = []
        for ln in self.lines:
            if ln.endswith(":") or ln.startswith(".") or ln.startswith(";"):
                out.append(ln)
            else:
                out.append("    " + ln)
        return "\n".join(out) + "\n"


def v(a, n=1):
    return f"v{a}" if n == 1 else f"v[{a}:{a + n - 1}]"


def s(a, n=1):
    return f"s{a}" if n == 1 else f"s[{a}:{a + n - 1}]"


_REG = re.compile(r"\b([vs])(\d+)\b|\b([vs])\[(\d+):(\d+)\]|\b(vcc|exec|m0)\b")


def regs_of(op):
    out = set()
    for m in _REG.finditer(op):
        if m.group(1):
            out.add((m.group(1), int(m.group(2))))
        elif m.group(3):
            for i in range(int(m.group(4)), int(m.group(5)) + 1):
                out.add((m.group(3), i))
        else:
            out.add((m.group(6), 0))
    return out


TRANS = ("v_exp_f32", "v_rcp_f32", "v_log_f32", "v_rsq_f32", "v_sqrt_f32", "v_sin_f32", "v_cos_f32")


class Ins:
    def __init__(self, line):
        self.line = line
        code = line.split(";")[0].strip()
        parts = code.split(None, 1)
        self.op = parts[0]
        rest = parts[1] if len(parts) > 1 else ""
        ops = [x.strip() for x in rest.split(",")] if rest else []
        self.ops = ops
        op = self.op
        self.is_mfma = op.startswith("v_mfma")
        self.is_valu = op.startswith("v_") and not self.is_mfma
        self.is_trans = op.replace("_e32", "").replace("_e64", "") in TRANS
        self.is_ds = op.startswith("ds_")
        self.is_vmem = op.startswith(("buffer_", "global_"))
        self.is_salu = op.startswith("s_")
        self.is_dpp = "_dpp" in op or "row_" in rest
        self.lds_dma = self.is_vmem and (" lds" in (" " + rest) or "load_lds" in op)
        self.w = set()
        self.r = set()
        self.states = 1
        if op == "s_nop":
            self.states = int(ops[0], 0) + 1
        if self.is_mfma:
            self.w = regs_of(ops[0])
            self.ra = regs_of(ops[1]) | regs_of(ops[2])
            self.rc = regs_of(ops[3])
            self.r = self.ra | self.rc
            self.passes = 4 if "16x16" in op else 8
        elif self.is_valu:
            self.w = regs_of(ops[0])
            for o in ops[1:]:
                self.r |= regs_of(o)
            if op.startswith(("v_fmac", "v_writelane")) or self.is_dpp:
                self.r |= regs_of(ops[0])
            if op.startswith(("v_add_co", "v_sub_co", "v_addc_co")):
                self.w |= regs_of(ops[1])
            if op.startswith("v_permlane"):
                self.w |= regs_of(ops[1])
                self.r |= regs_of(ops[0])
        elif self.is_ds:
            if "read" in op or "rtn" in op or "permute" in op or "swizzle" in op:
                self.w = regs_of(ops[0])
                for o in ops[1:]:
                    self.r |= regs_of(o)
            else:
                for o in ops:
                    self.r |= regs_of(o)
        elif self.is_vmem:
            if "load" in op and not self.lds_dma:
                self.w = regs_of(ops[0])
                for o in ops[1:]:
                    self.r |= regs_of(o)
            else:
                for o in ops:
                    self.r |= regs_of(o)
            if self.lds_dma:
                self.r.add(("m0", 0))
        elif self.is_salu and ops and not op.startswith(("s_cmp", "s_cbranch", "s_branch", "s_waitcnt", "s_nop", "s_barrier", "s_setprio", "s_bitcmp")):
            self.w = regs_of(ops[0])
            for o in ops[1:]:
                self.r |= regs_of(o)
            if "saveexec" in op:
                self.w.add(("exec", 0))
        self.store_data = set()
        if self.is_vmem and "store" in op and ("x3" in op or "x4" in op):
            self.store_data = regs_of(ops[0]) if op.startswith("buffer_") else regs_of(ops[1])


def need(p, c):
    n = 0
    vw = {x for x in p.w if x[0] == "v"}
    sw = {x for x in p.w if x[0] in ("s", "vcc")}
    if p.is_valu:
        if c.is_mfma and vw & c.r:
            n = max(n, 2)
        if c.is_valu and c.is_dpp and vw & c.r:
            n = max(n, 2)
        if c.op.startswith(("v_readfirstlane", "v_readlane")) and vw & c.r:
            n = max(n, 1)
        if c.op.startswith("v_permlane") and vw & c.r:
            n = max(n, 2)
        if p.is_trans and (c.is_valu or c.is_mfma) and not c.is_trans and vw & c.r:
            n = max(n, 1)
        if c.is_vmem and sw & c.r:
            n = max(n, 5)
        if c.is_valu and sw & c.r:
            n = max(n, 2)
            if c.op.startswith(("v_readlane", "v_writelane")):
                n = max(n, 4)
        if ("op_sel" in p.line and not p.op.startswith("v_pk") and "op_sel:[0,0,0,1]" in p.line or "dst_sel" in p.line) and c.is_valu and vw & c.r:
            n = max(n, 1)
    if p.is_mfma:
        big = {4: 8, 8: 12}[p.passes]
        if c.is_mfma:
            if vw & c.ra:
                n = max(n, big)
            if vw & c.rc and not (c.rc == vw and c.op == p.op):
                n = max(n, {4: 6, 8: 10}[p.passes])
            if vw & c.w and not (vw & c.rc) and False:
                n = max(n, big)
        elif c.is_valu:
            if vw & (c.r | c.w):
                n = max(n, big)
            if {x for x in p.rc if x[0] == "v"} & c.w:
                n = max(n, {4: 3, 8: 7}[p.passes])
        elif c.is_ds or c.is_vmem:
            if vw & (c.r | c.w):
                n = max(n, big)
    if p.is_salu and ("m0", 0) in p.w and c.lds_dma:
        n = max(n, 1)
    if p.store_data and (c.is_valu or c.is_mfma) and p.store_data & c.w:
        n = max(n, 2)
    return n


def check_hazards(lines):
    ins = []
    labels = {}
    for ln in lines:
        t = ln.strip()
        if not t or t.startswith(";") or t.startswith("."):
            continue
        if t.endswith(":"):
            labels[t[:-1]] = len(ins)
            continue
        ins.append(Ins(t))
    problems = []

    def succ(i):
        x = ins[i]
        if x.op == "s_endpgm":
            return []
        if x.op == "s_branch":
            return [labels[x.ops[0]]]
        if x.op.startswith("s_cbranch"):
            return [labels[x.ops[0]], i + 1]
        return [i + 1]

    for i, p in enumerate(ins):
        if not (p.is_valu or p.is_mfma or p.is_salu or p.store_data):
            continue
        stack = [(j, 0) for j in succ(i)]
        seen = {}
        while stack:
            j, d = stack.pop()
            if j >= len(ins) or d >= 12:
                continue
            if j in seen and seen[j] <= d:
                continue
            seen[j] = d
            c = ins[j]
            n = need(p, c)
            if n > d:
                problems.append(f"hazard: need {n} have {d}: [{p.line}] -> [{c.line}]")
            for k in succ(j):
                stack.append((k, d + c.states))
    return problems
```

```python
import sys
from asmlib import Asm, v, s, check_hazards

OPT = dict(a.split("=") for a in sys.argv[2:] if "=" in a)


def opt(k, d):
    return int(OPT.get(k, d))


NLOG2E = 0xBFB8AA3B
NLN2 = 0xBF317218
OFF_OFF = 2621440
AP_OFF = 3145728
TSTRIDE = 1572864
BP_OFF = AP_OFF + TSTRIDE
DP_OFF = AP_OFF + 2 * TSTRIDE
FR_OFF = 7864320
FR_W4H, FR_W4L, FR_WH2, FR_W3 = 0, 2048, 4096, 12288

a = Asm()
HEADER = open("standalone__cheap_equivariant_egnn__graph.s.ref").read().split("; Override")[0]
K1_LDS = 46080
K2_LDS = 158720 + 256
a.raw(HEADER.rstrip())
a.raw(f"; @launch kernel=egnn_bin_kernel grid=(251,1,1) block=(1024,1,1) lds={K1_LDS}")
a.raw(f"; @launch kernel=egnn_edge_kernel grid=(256,1,1) block=(512,1,1) lds={K2_LDS}")
a.raw('.amdgcn_target "amdgcn-amd-amdhsa--gfx950"')
a.raw(".text")


def kernel_head(name):
    a.raw(f".globl {name}")
    a.raw(".p2align 8")
    a.raw(f".type {name},@function")
    a.label(name)


def srd(d, base, nbytes, off=0):
    if off:
        a(f"s_add_u32 {s(d)}, {s(base)}, {off}")
        a(f"s_addc_u32 {s(d + 1)}, {s(base + 1)}, 0")
    else:
        a(f"s_mov_b32 {s(d)}, {s(base)}")
        a(f"s_mov_b32 {s(d + 1)}, {s(base + 1)}")
    a(f"s_mov_b32 {s(d + 2)}, {nbytes}")
    a(f"s_mov_b32 {s(d + 3)}, 0x20000")


kernel_head("egnn_bin_kernel")
a("""
s_cmp_gt_u32 s2, 250
s_cbranch_scc1 K1_END
s_load_dwordx4 s[4:7], s[0:1], 24
s_load_dwordx2 s[8:9], s[0:1], 80
s_load_dwordx2 s[10:11], s[0:1], 0
s_load_dwordx2 s[12:13], s[0:1], 40
s_load_dwordx2 s[14:15], s[0:1], 56
v_lshrrev_b32 v1, 6, v0
s_cmp_eq_u32 s2, 250
v_readfirstlane_b32 s3, v1
s_cbranch_scc1 K1_FRAG
s_cmp_ge_u32 s3, 10
s_cbranch_scc1 K1_GEMM
""")
a("""
s_mul_i32 s16, s2, 10240
v_lshlrev_b32 v1, 4, v0
v_add_u32 v2, s16, v1
v_lshlrev_b32 v3, 2, v0
v_mov_b32 v20, 0
ds_write_b32 v3, v20
s_waitcnt lgkmcnt(0)
global_load_dwordx4 v[4:7], v2, s[6:7]
global_load_dwordx4 v[8:11], v2, s[4:5]
s_barrier
v_mov_b32 v21, 4
v_lshlrev_b32 v22, 22, v0
v_and_b32 v23, 63, v0
v_lshlrev_b32 v23, 4, v23
s_mov_b32 s17, 52429
s_mov_b32 s18, 0x100000
s_mov_b32 s19, 0x200000
s_mov_b32 s20, 0x300000
s_waitcnt vmcnt(1)
""")
for k in range(4):
    a(f"""
    v_mul_u32_u24 v{12 + k}, s17, v{4 + k}
    v_lshrrev_b32 v{16 + k}, 21, v{12 + k}
    v_lshlrev_b32 v{16 + k}, 2, v{16 + k}
    ds_add_rtn_u32 v{32 + k}, v{16 + k}, v21
    """)
for k in range(4):
    a(f"""
    v_lshrrev_b32 v{12 + k}, 18, v{12 + k}
    v_mad_i32_i24 v{4 + k}, v{12 + k}, -5, v{4 + k}
    v_and_b32 v{12 + k}, 7, v{12 + k}
    v_lshl_or_b32 v{4 + k}, v{4 + k}, 3, v{12 + k}
    v_lshl_or_b32 v{4 + k}, v{4 + k}, 14, v22
    """)
a("""
s_waitcnt lgkmcnt(0)
s_barrier
ds_read_b128 v[24:27], v23
s_waitcnt vmcnt(0)
v_or_b32 v4, v4, v8
v_or3_b32 v5, v5, v9, s18
v_or3_b32 v6, v6, v10, s19
v_or3_b32 v7, v7, v11, s20
s_waitcnt lgkmcnt(0)
v_add_u32 v28, v24, v25
v_add_u32 v29, v28, v26
v_add_u32 v30, v29, v27
v_mov_b32 v31, v30
""")
for ctl in ("row_shr:1 row_mask:0xf", "row_shr:2 row_mask:0xf", "row_shr:4 row_mask:0xf", "row_shr:8 row_mask:0xf",
            "row_bcast:15 row_mask:0xa", "row_bcast:31 row_mask:0xc"):
    a("s_nop 1")
    a(f"v_add_u32_dpp v31, v31, v31 {ctl} bank_mask:0xf")
a("""
v_sub_u32 v36, v31, v30
v_add_u32 v37, v36, v24
v_add_u32 v38, v36, v28
v_add_u32 v39, v36, v29
ds_write_b128 v23, v[36:39] offset:1024
ds_read_b32 v12, v16 offset:1024
ds_read_b32 v13, v17 offset:1024
ds_read_b32 v14, v18 offset:1024
ds_read_b32 v15, v19 offset:1024
s_cmp_lg_u32 s3, 0
s_cbranch_scc1 K1_NOOFF
s_lshl_b32 s16, s2, 10
""")
a(f"s_add_u32 s16, s16, {OFF_OFF}")
a("""
v_add_u32 v8, s16, v23
v_lshl_or_b32 v24, v24, 16, v36
v_lshl_or_b32 v25, v25, 16, v37
v_lshl_or_b32 v26, v26, 16, v38
v_lshl_or_b32 v27, v27, 16, v39
global_store_dwordx4 v8, v[24:27], s[8:9]
""")
a.label("K1_NOOFF")
for k in range(4):
    a(f"""
    s_waitcnt lgkmcnt(3)
    v_add_u32 v{12 + k}, v{12 + k}, v{32 + k}
    ds_write_b32 v{12 + k}, v{4 + k} offset:4096
    """)
a("""
s_waitcnt lgkmcnt(0)
s_barrier
ds_read_b128 v[4:7], v1 offset:4096
s_waitcnt lgkmcnt(0)
global_store_dwordx4 v2, v[4:7], s[8:9]
s_endpgm
""")
a.label("K1_GEMM")
a("""
s_sub_u32 s3, s3, 10
s_lshr_b32 s16, s3, 1
s_and_b32 s17, s3, 1
v_and_b32 v1, 63, v0
v_lshlrev_b32 v2, 4, v1
s_lshl_b32 s18, s3, 12
s_add_u32 s19, s18, 16384
s_waitcnt lgkmcnt(0)
s_cmp_eq_u32 s16, 2
s_cselect_b32 s20, s14, s12
s_cselect_b32 s21, s15, s13
s_and_b32 s18, s18, 0x3fff
s_mov_b32 m0, s19
v_add_u32 v3, s18, v2
global_load_lds_dwordx4 v3, s[20:21]
global_load_lds_dwordx4 v3, s[20:21] offset:1024
global_load_lds_dwordx4 v3, s[20:21] offset:2048
global_load_lds_dwordx4 v3, s[20:21] offset:3072
s_cmp_ge_u32 s3, 5
s_cbranch_scc1 K1_NOH
s_lshl_b32 s22, s3, 3
v_lshrrev_b32 v4, 3, v1
v_add_u32 v4, s22, v4
v_lshrrev_b32 v5, 1, v4
v_xor_b32 v5, v5, v1
v_and_b32 v5, 7, v5
v_lshlrev_b32 v5, 4, v5
v_lshl_or_b32 v4, v4, 7, v5
s_mul_i32 s22, s2, 5120
v_add_u32 v4, s22, v4
s_lshl_b32 s22, s3, 10
s_add_u32 s22, s22, 40960
s_mov_b32 m0, s22
s_nop 0
global_load_lds_dwordx4 v4, s[10:11]
""")
a.label("K1_NOH")
a("""
s_barrier
v_lshrrev_b32 v4, 5, v1
v_lshlrev_b32 v5, 3, v4
v_bfe_u32 v6, v1, 2, 2
v_add_u32 v5, v5, v6
v_lshlrev_b32 v5, 7, v5
v_bfe_u32 v6, v1, 4, 1
v_lshl_or_b32 v5, v6, 5, v5
v_and_b32 v6, 3, v1
v_lshl_or_b32 v5, v6, 3, v5
s_lshl_b32 s22, s16, 13
s_add_u32 s22, s22, 16384
v_add_u32 v5, s22, v5
s_mul_i32 s22, s17, 20
v_and_b32 v6, 31, v1
v_cmp_gt_u32 s[26:27], 20, v6
v_add_u32 v6, s22, v6
v_lshrrev_b32 v7, 1, v6
v_xor_b32 v7, v7, v4
v_and_b32 v7, 7, v7
v_lshlrev_b32 v7, 4, v7
v_lshl_or_b32 v7, v6, 7, v7
v_xor_b32 v8, 32, v7
v_xor_b32 v9, 64, v7
v_xor_b32 v10, 0x60, v7
s_mul_i32 s22, s2, 5120
""")
a(f"s_mul_i32 s23, s16, {TSTRIDE}")
a(f"s_add_u32 s22, s22, {AP_OFF}")
a(f"""
s_add_u32 s22, s22, s23
v_lshlrev_b32 v11, 7, v6
v_lshl_or_b32 v11, v4, 5, v11
v_add_u32 v11, s22, v11
s_cmp_eq_u32 s16, 2
s_cselect_b32 s24, 1.0, {NLOG2E:#x}
s_mov_b32 s25, s24
s_waitcnt vmcnt(0)
s_barrier
""")
HB = 12
WA = 28
for st in range(4):
    a(f"ds_read_b128 {v(HB + 4 * st, 4)}, v{7 + st} offset:40960")
    for u in range(2):
        a(f"ds_read_b64_tr_b16 {v(WA + 4 * st + 2 * u, 2)}, v5 offset:{(16 * st + 4 * u) * 128}")
D0, D1 = 64, 80
for st in range(4):
    a(f"s_waitcnt lgkmcnt({9 - 3 * st + 2 * st})")
    a(f"v_mfma_f32_32x32x16_bf16 {v(D0, 16)}, {v(WA + 4 * st, 4)}, {v(HB + 4 * st, 4)}, {'0' if st == 0 else v(D0, 16)}")
    for u in range(2):
        a(f"ds_read_b64_tr_b16 {v(WA + 16 + 4 * st + 2 * u, 2)}, v5 offset:{(16 * st + 4 * u) * 128 + 64}")
for st in range(4):
    a(f"s_waitcnt lgkmcnt({6 - 2 * st})")
    a(f"v_mfma_f32_32x32x16_bf16 {v(D1, 16)}, {v(WA + 16 + 4 * st, 4)}, {v(HB + 4 * st, 4)}, {'0' if st == 0 else v(D1, 16)}")
a("s_nop 3")
a("s_mov_b64 exec, s[26:27]")
for fb, D in enumerate((D0, D1)):
    for i in range(8):
        a(f"v_pk_mul_f32 {v(D + 2 * i, 2)}, {v(D + 2 * i, 2)}, s[24:25]")
    for i in range(8):
        a(f"v_cvt_pk_bf16_f32 v{12 + 8 * fb + i}, v{D + 2 * i}, v{D + 2 * i + 1}")
    a(f"global_store_dwordx4 v11, {v(12 + 8 * fb, 4)}, s[8:9] offset:{64 * fb}")
    a(f"global_store_dwordx4 v11, {v(16 + 8 * fb, 4)}, s[8:9] offset:{64 * fb + 16}")
a("s_endpgm")
a.label("K1_FRAG")
a(f"""
v_and_b32 v1, 3, v0
v_bfe_u32 v2, v0, 2, 5
v_bfe_u32 v3, v0, 7, 1
v_bfe_u32 v4, v0, 8, 1
v_lshrrev_b32 v5, 9, v0
v_lshrrev_b32 v6, 1, v1
v_lshlrev_b32 v6, 3, v6
v_lshl_or_b32 v6, v5, 4, v6
v_lshl_or_b32 v6, v3, 2, v6
v_and_b32 v7, 1, v1
v_lshl_or_b32 v6, v7, 1, v6
v_lshl_or_b32 v8, v4, 5, v2
v_lshlrev_b32 v8, 1, v8
v_lshl_or_b32 v6, v6, 7, v8
v_add_u32 v6, 8192, v6
v_add_u32 v7, 4096, v6
v_lshlrev_b32 v9, 1, v1
v_lshl_or_b32 v9, v3, 3, v9
v_lshl_or_b32 v9, v9, 7, v8
v_add_u32 v9, {129 * 128}, v9
; W3: i = tid & 127
v_and_b32 v10, 31, v0
v_bfe_u32 v11, v0, 6, 1
v_lshl_or_b32 v10, v11, 5, v10
v_lshlrev_b32 v10, 1, v10
v_add_u32 v10, {128 * 128}, v10
v_lshlrev_b32 v12, 2, v0
v_add_u32 v12, {FR_OFF}, v12
s_mov_b32 s16, {NLOG2E:#x}
s_waitcnt lgkmcnt(0)
global_load_ushort v16, v6, s[14:15]
global_load_short_d16_hi v17, v6, s[14:15] offset:128
global_load_ushort v18, v7, s[14:15]
global_load_short_d16_hi v19, v7, s[14:15] offset:128
global_load_short_d16_hi v20, v9, s[12:13]
global_load_short_d16_hi v21, v9, s[12:13] offset:128
global_load_short_d16_hi v22, v10, s[12:13]
s_waitcnt vmcnt(0)
v_and_b32 v17, 0xffff0000, v17
v_and_b32 v19, 0xffff0000, v19
v_and_b32 v20, 0xffff0000, v20
v_and_b32 v21, 0xffff0000, v21
v_and_b32 v22, 0xffff0000, v22
v_or_b32 v16, v16, v17
v_or_b32 v18, v18, v19
v_add_u32 v13, {FR_WH2}, v12
v_add_u32 v14, {FR_WH2 + 4096}, v12
global_store_dword v13, v16, s[8:9]
global_store_dword v14, v18, s[8:9]
v_mul_f32 v23, s16, v20
v_mul_f32 v24, s16, v21
v_mul_f32 v25, s16, v22
v_cvt_pk_bf16_f32 v26, v23, v24
v_cvt_pk_bf16_f32 v27, 0, v25
v_lshlrev_b32 v23, 16, v26
v_and_b32 v24, 0xffff0000, v26
v_fma_f32 v23, v20, s16, -v23
v_fma_f32 v24, v21, s16, -v24
v_fma_f32 v25, v22, s16, -v27
v_cvt_pk_bf16_f32 v28, v23, v24
v_cvt_pk_bf16_f32 v29, 0, v25
v_and_b32 v30, 32, v0
v_cmp_eq_u32 vcc, 0, v30
s_cmp_ge_u32 s3, 8
s_cbranch_scc1 K1_END
v_cndmask_b32 v27, v29, v27, vcc
global_store_dword v12, v26, s[8:9] offset:{FR_W4H}
global_store_dword v12, v28, s[8:9] offset:{FR_W4L}
s_cmp_ge_u32 s3, 2
s_cbranch_scc1 K1_END
v_add_u32 v13, {FR_W3}, v12
global_store_dword v13, v27, s[8:9]
""")
a.label("K1_END")
a("s_endpgm")

L_CNT = 60416
L_FLAG = L_CNT + 32
L_EA = 61440
L_BF = 77824
L_SP = 110592
L_LUT = 122880
L_LS = 125952
L_LE = L_LS + 16384
CAPB = 1792

sW = 3
sH, sPOS, sEAT = 4, 6, 8
sWX, sOUT, sWS = 10, 12, 14
sBIN, sN0 = 16, 17
sMODE, sNT = 18, 19
rBP, rEA, rOFF, rAP, rPOS, rH, rOUT = 20, 24, 28, 32, 36, 40, 44
sBF = 48
sEAd = 52
s128 = 53
sC, sJ, sEND, sSTART = 54, 55, 56, 57
sLN2 = 58
sM1 = 60
sM2 = 76
sT = 92

vL = 1
pS1, pS4, pE, vEArd = 2, 3, 4, 5
vBF = 6
vQ0, vQ1, vEq, vTR, vLUTb, vSb, vSaddr = 10, 11, 12, 13, 14, 15, 16
vRec, vEid, vPa, vLa = 17, 18, 19, 20
vD2 = 21
vZ = 22
vS4 = 24
vLq = 28
vPs = 32
vTmp = 35
vQd = 36
OH = 38
T = 40
EA = 44
OB = 48
P0, P1 = 52, 68
ACC0, ACC1 = 84, 100
M0, M1 = 116, 124
BF0, BF1 = 132, 140
SP = 148
PERM = 156
W4H, W4L = 164, 172
WH2 = 180
WX = 212
DD = 228
HR = 234
PR = 240
vOo = 241
vPo = 242
vX = 243
NVGPR = 248

kernel_head("egnn_edge_kernel")
a(f"""
s_cmp_ge_u32 s2, 256
s_cbranch_scc1 K2_END
s_load_dwordx4 s[4:7], s[0:1], 0
s_load_dwordx2 s[8:9], s[0:1], 16
s_load_dwordx2 s[10:11], s[0:1], 48
s_load_dwordx2 s[12:13], s[0:1], 64
s_load_dwordx2 s[14:15], s[0:1], 80
v_lshrrev_b32 v2, 6, v0
v_and_b32 v{vL}, 63, v0
v_readfirstlane_b32 s{sW}, v2
s_and_b32 s{sBIN}, s2, 7
s_lshl_b32 s{sBIN}, s{sBIN}, 5
s_lshr_b32 s{sT}, s2, 3
s_add_u32 s{sBIN}, s{sBIN}, s{sT}
s_mul_i32 s{sN0}, s{sBIN}, 40
s_mul_i32 s{sT + 1}, s{sW}, 5
s_add_u32 s{sN0}, s{sN0}, s{sT + 1}
v_lshrrev_b32 v3, 4, v0
s_lshl_b32 s{sT + 1}, s{sBIN}, 2
v_lshl_add_u32 v4, v3, 10, s{sT + 1}
s_mul_i32 s{sT}, s{sT}, 320
v_add_lshl_u32 v5, v0, s{sT}, 7
s_waitcnt lgkmcnt(0)
""")
srd(rOFF, sWS, 250 * 1024, OFF_OFF)
srd(rBP, sWS, 1280000, BP_OFF)
a(f"""
s_cmp_ge_u32 s{sBIN}, 250
s_cbranch_scc1 K2_IDLE
""")
ENT = P0
REC1 = P0 + 8
REC2 = P1
for i in range(8):
    if i:
        a(f"s_mov_b32 s{sT}, {i * 32768}")
    a(f"buffer_load_dword v{ENT + i}, v4, {s(rOFF, 4)}, {'0' if i == 0 else s(sT)} offen")
srd(rAP, sWS, 1280000, AP_OFF)
srd(rPOS, sPOS, 60000)
srd(rEA, sEAT, 20480000)
srd(rH, sH, 1280000)
srd(rOUT, sOUT, 1340000)
TA = BF0
a(f"""
v_and_b32 v{TA}, 31, v{vL}
v_lshrrev_b32 v{TA + 1}, 5, v{vL}
v_lshlrev_b32 v{TA + 2}, 4, v{vL}
v_add_u32 v{TA + 3}, {FR_OFF}, v{TA + 2}
global_load_dwordx4 {v(W4H, 4)}, v{TA + 3}, {s(sWS, 2)} offset:{FR_W4H}
global_load_dwordx4 {v(W4H + 4, 4)}, v{TA + 3}, {s(sWS, 2)} offset:{FR_W4H + 1024}
global_load_dwordx4 {v(W4L, 4)}, v{TA + 3}, {s(sWS, 2)} offset:{FR_W4L}
global_load_dwordx4 {v(W4L + 4, 4)}, v{TA + 3}, {s(sWS, 2)} offset:{FR_W4L + 1024}
v_lshlrev_b32 v{TA + 3}, 2, v{vL}
v_add_u32 v{TA + 3}, {FR_OFF + FR_W3}, v{TA + 3}
global_load_dword v{M0}, v{TA + 3}, {s(sWS, 2)}
global_load_dword v{M0 + 1}, v{TA + 3}, {s(sWS, 2)} offset:256
v_bfe_u32 v{TA + 3}, v{TA}, 2, 1
v_lshlrev_b32 v{TA + 3}, 4, v{TA + 3}
v_and_b32 v{TA + 4}, 3, v{TA}
v_or_b32 v{TA + 3}, v{TA + 3}, v{TA + 4}
v_lshrrev_b32 v{TA + 4}, 3, v{TA}
v_lshl_or_b32 v{TA + 3}, v{TA + 4}, 2, v{TA + 3}
v_add_lshl_u32 v{TA + 4}, v{TA + 1}, s{sN0}, 7
v_lshl_add_u32 v{vX}, v{TA + 3}, 1, v{TA + 4}
v_lshl_add_u32 v{vOo}, v{TA}, 1, v{TA + 4}
""")
for fb in range(2):
    a(f"buffer_load_ushort v{M0 + 2 + 3 * fb}, v{vX}, {s(rAP, 4)}, 0 offen offset:{64 * fb}")
    a(f"buffer_load_ushort v{M0 + 3 + 3 * fb}, v{vX}, {s(rAP, 4)}, 0 offen offset:{64 * fb + 256}")
    a(f"buffer_load_ushort v{M0 + 4 + 3 * fb}, v{vX}, {s(rAP, 4)}, 0 offen offset:{64 * fb + 512}")
a(f"""
v_add_u32 v{TA + 3}, s{sN0}, v{TA}
v_mul_u32_u24 v{TA + 3}, 6, v{TA + 3}
buffer_load_ushort v{M1}, v{TA + 3}, {s(rPOS, 4)}, 0 offen
buffer_load_ushort v{M1 + 1}, v{TA + 3}, {s(rPOS, 4)}, 0 offen offset:2
buffer_load_ushort v{M1 + 2}, v{TA + 3}, {s(rPOS, 4)}, 0 offen offset:4
s_lshl_b32 s{sT}, s{sW}, 10
""")
for k in range(8):
    if k == 7:
        a(f"s_cmp_ge_u32 s{sW}, 3")
        a("s_cbranch_scc1 K2_NOPOS")
    a(f"s_mov_b32 m0, s{sT}")
    a("s_nop 0")
    a(f"buffer_load_dwordx4 v{TA + 2}, {s(rPOS, 4)}, s{sT} offen lds")
    a(f"s_add_u32 s{sT}, s{sT}, 8192")
a.label("K2_NOPOS")
a(f"""
s_cmp_ge_u32 s{sW}, 5
s_cbranch_scc1 K2_NOWARM
buffer_load_dword v{vTmp}, v5, {s(rBP, 4)}, 0 offen
""")
a.label("K2_NOWARM")
N_AFTER_OFF = 4 + 2 + 6 + 3 + 7


def init_lists(t):
    a(f"""
    s_lshl_b32 s{sT}, s{sW}, 11
    s_add_u32 s{sT}, s{sT}, {L_LS}
    v_lshl_add_u32 v{t + 4}, v{vL}, 4, s{sT}
    v_mov_b32 v{t}, 0xa2710
    v_mov_b32 v{t + 1}, 0xa2710
    v_mov_b32 v{t + 2}, 0xa2710
    v_mov_b32 v{t + 3}, 0xa2710
    ds_write_b128 v{t + 4}, {v(t, 4)}
    ds_write_b128 v{t + 4}, {v(t, 4)} offset:1024
    v_bfrev_b32 v{t}, 1
    v_bfrev_b32 v{t + 1}, 1
    v_bfrev_b32 v{t + 2}, 1
    v_bfrev_b32 v{t + 3}, 1
    ds_write_b128 v{t + 4}, {v(t, 4)} offset:16384
    ds_write_b128 v{t + 4}, {v(t, 4)} offset:17408
    v_lshlrev_b32 v{t + 4}, 2, v{vL}
    v_add_u32 v{t + 4}, {L_LE + 16384}, v{t + 4}
    ds_write_b32 v{t + 4}, v{t}
    s_lshl_b32 s{sT + 1}, s{sW}, 2
    v_mov_b32 v{t + 4}, s{sT + 1}
    v_mov_b32 v{t + 5}, s{sT}
    ds_write_b32 v{t + 4}, v{t + 5} offset:{L_CNT}
    v_mov_b32 v{t + 4}, 0
    ds_write_b32 v{t + 4}, v{t + 4} offset:{L_FLAG}
    """)


init_lists(SP)
a("s_waitcnt lgkmcnt(0)")
a("s_barrier")
e_, hf_, t0, t1, t2 = TA, TA + 1, TA + 3, TA + 4, TA + 5
a(f"""
s_lshl_b32 s{sT}, s{sW}, 12
s_add_u32 s{sBF}, s{sT}, {L_BF}
s_add_u32 s{sBF + 1}, s{sBF}, 1024
s_add_u32 s{sBF + 2}, s{sBF}, 2048
s_add_u32 s{sBF + 3}, s{sBF}, 3072
v_lshrrev_b32 v{t0}, 1, v{e_}
v_xor_b32 v{t0}, v{t0}, v{hf_}
v_and_b32 v{t0}, 7, v{t0}
v_lshlrev_b32 v{t0}, 4, v{t0}
v_lshl_or_b32 v{t0}, v{e_}, 7, v{t0}
v_add_u32 v{vBF}, s{sBF}, v{t0}
v_xor_b32 v{vBF + 1}, 32, v{vBF}
v_xor_b32 v{vBF + 2}, 64, v{vBF}
v_xor_b32 v{vBF + 3}, 0x60, v{vBF}
v_lshrrev_b32 v{t0}, 4, v{vL}
v_xor_b32 v{t0}, v{t0}, v{vL}
v_and_b32 v{t1}, 7, v{t0}
v_lshlrev_b32 v{vQ0}, 4, v{t1}
v_xor_b32 v{vQ1}, 64, v{vQ0}
v_and_b32 v{t1}, 1, v{t0}
v_lshlrev_b32 v{vEq}, 4, v{t1}
s_mul_i32 s{sT}, s{sW}, 1536
s_add_u32 s{sT}, s{sT}, {L_SP}
v_bfe_u32 v{t0}, v{vL}, 2, 2
v_lshl_or_b32 v{t0}, v{hf_}, 2, v{t0}
v_mul_u32_u24 v{t0}, 48, v{t0}
v_bfe_u32 v{t1}, v{vL}, 4, 1
v_and_b32 v{t2}, 3, v{vL}
v_lshl_or_b32 v{t1}, v{t1}, 2, v{t2}
v_min_u32 v{t1}, 5, v{t1}
v_lshl_add_u32 v{t0}, v{t1}, 3, v{t0}
v_add_u32 v{vTR}, s{sT}, v{t0}
v_mul_u32_u24 v{t0}, 48, v{e_}
v_add_u32 v{vSb}, s{sT}, v{t0}
s_mul_i32 s{sT}, s{sW}, 384
s_add_u32 s{sT}, s{sT}, {L_LUT}
v_mul_u32_u24 v{t0}, 0xc0, v{hf_}
v_add_u32 v{vLUTb}, s{sT}, v{t0}
v_mov_b32 v{vZ}, 0
v_mov_b32 v{vZ + 1}, 0
v_mov_b32 v{vPs}, 0
v_mov_b32 v{vPs + 1}, 0
v_mov_b32 v{vPs + 2}, 0
s_movk_i32 s{s128}, 0x80
s_mov_b32 s{sLN2}, {NLN2:#x}
s_mov_b32 s{sLN2 + 1}, {NLN2:#x}
s_mov_b32 s{sMODE}, 0
v_and_b32 v5, 15, v{vL}
v_lshlrev_b32 v5, 2, v5
v_mul_u32_u24 v3, 0xa00, v3
v_lshl_add_u32 v4, v3, 2, v5
v_add_u32 v2, 64, v5
v_mov_b32 v{t2}, 0
""")
a(f"s_waitcnt vmcnt({N_AFTER_OFF})")
RA = P1 + 8
for i in range(8):
    a(f"""
    v_and_b32 v{t0}, 0xffff, v{ENT + i}
    v_lshrrev_b32 v{ENT + i}, 16, v{ENT + i}
    s_mov_b32 s{sT}, {i * 32 * 10240}
    v_add3_u32 v{RA + i}, v{t0}, v4, s{sT}
    global_load_dword v{REC1 + i}, v{RA + i}, {s(sWS, 2)}
    v_cmp_lt_u32 {s(sM1 + 2 * i, 2)}, v5, v{ENT + i}
    v_cmp_lt_u32 {s(sM2 + 2 * i, 2)}, v2, v{ENT + i}
    v_max_u32 v{t2}, v{t2}, v{ENT + i}
    """)
for i in range(8):
    a(f"""
    s_mov_b64 exec, {s(sM2 + 2 * i, 2)}
    s_cbranch_execz K2_R2L{i}
    global_load_dword v{REC2 + i}, v{RA + i}, {s(sWS, 2)} offset:64
    """)
    a.label(f"K2_R2L{i}")
a(f"""
s_mov_b64 exec, -1
v_cmp_lt_u32 vcc, 0x80, v{t2}
s_cbranch_vccz K2_NOFLAG
v_mov_b32 v{t0}, 1
ds_write_b32 v{vZ}, v{t0} offset:{L_FLAG}
""")
a.label("K2_NOFLAG")
a(f"""
v_and_b32 v{t0}, 1, v{e_}
v_lshlrev_b32 v{t0}, 4, v{t0}
v_mov_b32 v{t1}, 0x3f80
v_lshlrev_b32 v{t0}, v{t0}, v{t1}
v_bfe_u32 v{t1}, v{e_}, 1, 1
v_bfe_u32 v{t2}, v{e_}, 3, 1
v_lshl_or_b32 v{t1}, v{t2}, 1, v{t1}
v_bfe_u32 v{t2}, v{e_}, 2, 1
v_lshl_or_b32 v{t1}, v{t2}, 2, v{t1}
v_lshrrev_b32 v{t2}, 4, v{e_}
v_xor_b32 v{t2}, v{t2}, v{hf_}
v_lshl_or_b32 v{t1}, v{t2}, 3, v{t1}
""")
for r in range(8):
    a(f"v_cmp_eq_u32 vcc, {r}, v{t1}")
    a(f"v_mov_b32 v{ACC0 + 4 * r}, 0")
    a(f"v_mov_b32 v{ACC0 + 4 * r + 1}, 0")
    a(f"v_cndmask_b32 v{PERM + r}, 0, v{t0}, vcc")
    a(f"v_mov_b32 v{ACC0 + 4 * r + 2}, 0")
    a(f"v_mov_b32 v{ACC0 + 4 * r + 3}, 0")
a(f"""
v_lshrrev_b32 v{t0}, 2, v{e_}
v_add_u32 v{t0}, s{sN0}, v{t0}
v_mul_u32_u24 v{t0}, 3, v{t0}
v_and_b32 v{t1}, 3, v{e_}
v_add3_u32 v{t0}, v{t0}, v{t1}, -1
v_lshlrev_b32 v{vPo}, 1, v{t0}
v_xor_b32 v{t0}, v{e_}, v{hf_}
v_cmp_eq_u32 vcc, 0, v{t0}
v_mov_b32 v{t1}, 0x3f80
v_mov_b32 v{t2}, 1.0
v_cndmask_b32 v{M1 + 4}, 0, v{t1}, vcc
v_cmp_eq_u32 vcc, 2, v{t0}
v_lshl_add_u32 v{M1 + 5}, v{e_}, 5, v{vLUTb}
s_nop 0
v_cndmask_b32 v{M1 + 4}, v{M1 + 4}, v{t2}, vcc
v_cmp_eq_u32 vcc, 4, v{t0}
v_mov_b32 v{t1}, 4
s_nop 0
v_cndmask_b32 v{M1 + 3}, 0, v{t2}, vcc
v_cmp_gt_u32 vcc, 6, v{e_}
s_waitcnt vmcnt(0)
""")
FOUR = t1


def scatter_a(rec, t):
    a(f"""
    v_lshrrev_b32 v{t}, 12, v{rec}
    v_and_b32 v{t}, 28, v{t}
    ds_add_rtn_u32 v{t}, v{t}, v{FOUR} offset:{L_CNT}
    """)


def scatter_b(rec, t, cb, tmp):
    a(f"""
    v_lshrrev_b32 v{tmp}, 20, v{rec}
    v_add_lshl_u32 v{tmp}, v{tmp}, {cb}, 5
    v_and_b32 v{rec}, 0xe3fff, v{rec}
    v_min_u32 v{t}, {L_LE - 4}, v{t}
    ds_write2st64_b32 v{t}, v{rec}, v{tmp} offset1:64
    """)


for i in range(8):
    a(f"s_mov_b64 exec, {s(sM1 + 2 * i, 2)}")
    scatter_a(REC1 + i, RA + i)
a(f"""
s_mov_b64 exec, vcc
v_lshlrev_b32 v{M1}, 16, v{M1}
v_lshlrev_b32 v{M1 + 1}, 16, v{M1 + 1}
v_lshlrev_b32 v{M1 + 2}, 16, v{M1 + 2}
ds_write_b128 v{M1 + 5}, {v(M1, 4)}
ds_write_b32 v{M1 + 5}, v{M1 + 4} offset:16
s_mov_b64 exec, -1
v_lshl_or_b32 v{OB}, v{M0 + 3}, 16, v{M0 + 2}
v_or_b32 v{OB + 1}, v{M0}, v{M0 + 4}
v_lshl_or_b32 v{OB + 2}, v{M0 + 6}, 16, v{M0 + 5}
v_or_b32 v{OB + 3}, v{M0 + 1}, v{M0 + 7}
""")
for i in range(1, 8):
    a(f"v_add_u32 v{ENT + i}, {i * 32 * 2560}, v3")
a(f"v_mov_b32 v{ENT}, v3")
for i in range(8):
    a(f"s_mov_b64 exec, {s(sM1 + 2 * i, 2)}")
    a(f"s_waitcnt lgkmcnt({9})")
    scatter_b(REC1 + i, RA + i, f"v{ENT + i}", t0)
for i in range(8):
    a(f"""
    s_mov_b64 exec, {s(sM2 + 2 * i, 2)}
    s_cbranch_execz K2_R2S{i}
    """)
    scatter_a(REC2 + i, RA + i)
    a("s_waitcnt lgkmcnt(0)")
    scatter_b(REC2 + i, RA + i, f"v{ENT + i}", t0)
    a.label(f"K2_R2S{i}")
a(f"""
s_mov_b64 exec, -1
s_waitcnt lgkmcnt(0)
s_barrier
v_min_u32 v{t0}, 8, v{vL}
v_lshlrev_b32 v{t1}, 2, v{t0}
ds_read_b32 v{t2}, v{t1} offset:{L_CNT}
v_lshlrev_b32 v{t1}, 11, v{t0}
v_add_u32 v{t1}, {L_LS + CAPB}, v{t1}
v_cmp_gt_u32 vcc, 8, v{t0}
s_nop 1
v_cndmask_b32 v{t1}, 0, v{t1}, vcc
s_waitcnt lgkmcnt(0)
v_cmp_gt_u32 vcc, v{t2}, v{t1}
s_cbranch_vccnz K2_SLOW_INIT
""")
a.label("K2_PROCESS")
a(f"""
s_nop 0
v_readlane_b32 s{sNT}, v{t2}, s{sW}
s_lshl_b32 s{sT}, s{sW}, 11
s_add_u32 s{sT + 1}, s{sT}, {L_LS}
s_add_u32 s{sEAd}, s{sT}, {L_EA}
v_and_b32 v{e_}, 31, v{vL}
v_and_b32 v{t0}, 7, v{vL}
v_lshlrev_b32 v{t0}, 2, v{t0}
v_bfe_u32 v{t1}, v{vL}, 3, 2
v_add_lshl_u32 v{t0}, v{t0}, v{t1}, 2
v_add_u32 v{pS1}, s{sT + 1}, v{t0}
v_lshrrev_b32 v{t0}, 3, v{vL}
v_lshl_add_u32 v{pS4}, v{t0}, 4, s{sT + 1}
v_bfe_u32 v{t0}, v{vL}, 1, 3
v_lshlrev_b32 v{t0}, 2, v{t0}
v_lshrrev_b32 v{t1}, 4, v{vL}
v_add_lshl_u32 v{t0}, v{t0}, v{t1}, 2
v_add_u32 v{pE}, s{sT + 1}, v{t0}
ds_read_b128 {v(vS4, 4)}, v{pS4}
ds_read_b32 v{vEid}, v{pE} offset:16384
ds_read_b32 v{vTmp}, v{pE} offset:{16384 + 128}
ds_read_b32 v{vRec}, v{pS1}
v_lshrrev_b32 v{t0}, 5, v{vL}
v_lshrrev_b32 v{t1}, 3, v{vL}
v_xor_b32 v{t0}, v{t0}, v{t1}
v_and_b32 v{t0}, 1, v{t0}
v_lshlrev_b32 v{t0}, 4, v{t0}
v_lshl_or_b32 v{t0}, v{e_}, 5, v{t0}
v_add_u32 v{vEArd}, s{sEAd}, v{t0}
s_mul_i32 s{sT + 2}, s{sW}, 1536
s_add_u32 s{sT + 2}, s{sT + 2}, {L_SP}
v_lshl_add_u32 v{t0}, v{vL}, 3, s{sT + 2}
ds_write_b64 v{t0}, {v(vZ, 2)}
ds_write_b64 v{t0}, {v(vZ, 2)} offset:512
ds_write_b64 v{t0}, {v(vZ, 2)} offset:1024
s_sub_u32 s{sNT}, s{sNT}, s{sT + 1}
s_add_u32 s{sNT}, s{sNT}, 127
s_lshr_b32 s{sNT}, s{sNT}, 7
""")


def dma_addr():
    return [f"v_mad_u32_u16 v{vS4 + i}, v{vS4 + i}, s{s128}, v{vQ0 + (i & 1)}" for i in range(4)] + [f"v_or_b32 v{vEid}, v{vEid}, v{vEq}"]


def dma_bp(i):
    return [f"s_mov_b32 m0, s{sBF + i}", f"buffer_load_dwordx4 v{vS4 + i}, {s(rBP, 4)}, 0 offen lds"]


EAPOL = OPT.get("eapol", "")


def dma_ea(reg):
    return [f"s_mov_b32 m0, s{sEAd}", f"buffer_load_dwordx4 v{reg}, {s(rEA, 4)}, 0 offen lds {EAPOL}".rstrip()]


def emit_dma(pair):
    a(pair[0])
    a("s_nop 0")
    a(pair[1])


prep_addr = [f"v_mad_u32_u16 v{vPa}, v{vRec}, 6, 0", f"v_mad_u32_u16 v{vLa}, v{vRec}, 16, v{vLUTb} op_sel:[1,0,0,0]"]
prep_rd = [f"ds_read_u16_d16_hi v{vPs}, v{vPa}", f"ds_read_u16_d16_hi v{vPs + 1}, v{vPa} offset:2", f"ds_read_u16_d16_hi v{vPs + 2}, v{vPa} offset:4",
           f"ds_read_b128 {v(vLq, 4)}, v{vLa}"]
prep_oh = f"ds_read_b32 v{OH}, v{vLa} offset:16"
prep_v1 = [f"v_sub_f32 v{vLq}, v{vLq}, v{vPs}", f"v_sub_f32 v{vLq + 1}, v{vLq + 1}, v{vPs + 1}", f"v_sub_f32 v{vLq + 2}, v{vLq + 2}, v{vPs + 2}",
           f"v_mul_f32 v{vD2}, v{vLq}, v{vLq}", f"v_fmac_f32 v{vD2}, v{vLq + 1}, v{vLq + 1}", f"v_fmac_f32 v{vD2}, v{vLq + 2}, v{vLq + 2}"]
prep_v2 = [f"v_cvt_pk_bf16_f32 v{vQd}, 1.0, v{vLq}", f"v_cvt_pk_bf16_f32 v{vQd + 1}, v{vLq + 1}, v{vLq + 2}",
           f"v_mad_u32_u16 v{vSaddr}, v{vRec}, 4, v{vSb} op_sel:[1,0,0,0]", f"v_cvt_pk_bf16_f32 v{OH + 1}, v{vLq + 3}, v{vD2}",
           f"ds_write_b64 v{vSaddr}, {v(vQd, 2)}"]
rd_frag = [f"ds_read_b128 {v(EA, 4)}, v{vEArd}", f"ds_read_b128 {v(BF0, 4)}, v{vBF}", f"ds_read_b128 {v(BF0 + 4, 4)}, v{vBF + 1}",
           f"ds_read_b128 {v(BF1, 4)}, v{vBF + 2}", f"ds_read_b128 {v(BF1 + 4, 4)}, v{vBF + 3}"]


def mf(d, x, y, c=None, n=4):
    op = "v_mfma_f32_32x32x16_bf16" if n == 4 else "v_mfma_f32_32x32x8_bf16"
    return f"{op} {v(d, 16)}, {v(x, n)}, {v(y, n)}, {'0' if c == 0 else v(d, 16)}"


a("s_waitcnt lgkmcnt(3)")
for x in dma_addr():
    a(x)
a(f"v_or_b32 v{vTmp}, v{vTmp}, v{vEq}")
emit_dma(dma_ea(vEid))
for i in range(4):
    emit_dma(dma_bp(i))
a(f"s_xor_b32 s{sEAd}, s{sEAd}, 1024")
emit_dma(dma_ea(vTmp))
a(f"s_xor_b32 s{sEAd}, s{sEAd}, 1024")
for x in prep_addr + prep_rd + [prep_oh]:
    a(x)
a(f"ds_read_b128 {v(vS4, 4)}, v{pS4} offset:128")
a(f"ds_read_b32 v{vEid}, v{pE} offset:{16384 + 256}")
a(f"""
v_lshlrev_b32 v{vX + 1}, 4, v{vL}
v_add_u32 v{vX + 1}, {FR_OFF + FR_WH2}, v{vX + 1}
v_add_u32 v{vX + 2}, 4096, v{vX + 1}
""")
nlate = 0
for i in range(8):
    a(f"global_load_dwordx4 {v(WH2 + 4 * i, 4)}, v{vX + 1 + (i >> 2)}, {s(sWS, 2)} offset:{(i & 3) * 1024}")
    nlate += 1
a(f"""
v_lshrrev_b32 v{vX + 1}, 5, v{vL}
v_lshlrev_b32 v{vX + 1}, 3, v{vX + 1}
v_add_u32 v{vX + 2}, {DP_OFF}, v{vX}
""")
for i in range(8):
    a(f"global_load_dwordx2 {v(WX + 2 * i, 2)}, v{vX + 1}, {s(sWX, 2)} offset:{i * 16}")
    nlate += 1
for fb in range(2):
    for j in range(3):
        a(f"global_load_ushort v{DD + 3 * fb + j}, v{vX + 2}, {s(sWS, 2)} offset:{64 * fb + 256 * j}")
        a(f"buffer_load_ushort v{HR + 3 * fb + j}, v{vOo}, {s(rH, 4)}, 0 offen offset:{64 * fb + 256 * j}")
        nlate += 2
a(f"buffer_load_ushort v{PR}, v{vPo}, {s(rPOS, 4)}, 0 offen")
nlate += 1
a("s_waitcnt lgkmcnt(0)")
for x in prep_v1 + prep_v2 + dma_addr():
    a(x)
for r in range(8):
    a(f"v_mov_b32 v{SP + r}, 0")
    a(f"v_mov_b32 v{M1 + r}, 0")
for r in range(4):
    a(f"v_mov_b32 v{T + r}, 0")
a(f"s_waitcnt vmcnt({nlate + 1})")
for x in rd_frag:
    a(x)
a(f"v_xor_b32 v{vEArd}, 0x400, v{vEArd}")
a("s_waitcnt lgkmcnt(4)")
a(mf(P0, EA, W4H, 0))
a(mf(P0, EA, W4L))
a("s_waitcnt lgkmcnt(0)")
a(mf(P0, BF0, PERM))
a(mf(P0, BF0 + 4, PERM + 4))
for i in range(4):
    emit_dma(dma_bp(i))
a(mf(P0, OH, OB, n=2))
emit_dma(dma_ea(vEid))
a(f"s_xor_b32 s{sEAd}, s{sEAd}, 1024")
a(f"s_cmp_eq_u32 s{sNT}, 0")
a("s_cbranch_scc1 K2_DRAINED")
a("s_nop 4")


def silu_slots(P, M, Mprev):
    sl = []
    for k in range(4):
        mdst = (Mprev + 6) if k == 0 else (M + 2 * (k - 1))
        pre = [f"v_cvt_pk_bf16_f32 v{mdst}, v{T}, v{T + 1}", f"v_cvt_pk_bf16_f32 v{mdst + 1}, v{T + 2}, v{T + 3}"]
        tr = [f"v_exp_f32 v{T + i}, v{P + 4 * k + i}" for i in range(4)]
        pk = [f"v_pk_add_f32 {v(T + 2 * i, 2)}, {v(T + 2 * i, 2)}, 1.0 op_sel_hi:[1,0]" for i in range(2)]
        sl.append((pre, tr, pk))
        tr = [f"v_rcp_f32 v{T + i}, v{T + i}" for i in range(4)]
        pk = [f"v_pk_mul_f32 {v(T + 2 * i, 2)}, {v(T + 2 * i, 2)}, {v(P + 4 * k + 2 * i, 2)}" for i in range(2)]
        sl.append(([], tr, pk))
    return sl


def emit_slot(before, mfma, after, slot, mid=()):
    pre, tr, pk = slot
    for x in before:
        a(x)
    if mfma:
        a(mfma)
    for x in after:
        a(x)
    for x in pre:
        a(x)
    mid = list(mid)
    for i, x in enumerate(tr):
        a(x)
        n = -(-len(mid) // (4 - i))
        for y in mid[:n]:
            a(y)
        mid = mid[n:]
    for x in pk:
        a(x)


a.raw(".p2align 3")
a.label("K2_LOOP")
A_ = silu_slots(P0, M0, M1)
B_ = silu_slots(P1, M1, M0)
emit_slot([], mf(P1, BF1, PERM, 0),
          [f"ds_read_b32 v{vRec}, v{pS1} offset:128", f"ds_read_b128 {v(vS4, 4)}, v{pS4} offset:256", f"ds_read_b32 v{vEid}, v{pE} offset:{16384 + 384}"], A_[0])
emit_slot([], mf(P1, BF1 + 4, PERM + 4), [f"v_add_u32 v{p}, 0x80, v{p}" for p in (pS1, pS4, pE)], A_[1])
emit_slot([], mf(P1, EA, W4H + 4), [], A_[2])
emit_slot([], mf(P1, EA, W4L + 4), ["s_waitcnt lgkmcnt(2)"] + prep_addr, A_[3], prep_rd)
emit_slot([], mf(ACC1, M1, SP), [], A_[4])
emit_slot([], mf(P1, OH, OB + 2, n=2), ["s_waitcnt vmcnt(1) lgkmcnt(0)", rd_frag[0]] + prep_v1[:3] + [rd_frag[1]] + prep_v1[3:], A_[5], rd_frag[2:] + [prep_oh])
emit_slot([], mf(ACC1, M1 + 4, SP + 4), [], A_[6],
          [f"ds_read_b64_tr_b16 {v(SP + 2 * q, 2)}, v{vTR} offset:{q * 384}" for q in range(4)] + [f"ds_write_b64 v{vSaddr}, {v(vZ, 2)}"])
emit_slot([], None, prep_v2 + [f"v_xor_b32 v{vEArd}, 0x400, v{vEArd}"], A_[7])
emit_slot(["s_waitcnt lgkmcnt(11)"], mf(P0, EA, W4H, 0), [], B_[0])
emit_slot([], mf(P0, EA, W4L), dma_addr(), B_[1])
emit_slot(["s_waitcnt lgkmcnt(7)"], mf(P0, BF0, PERM), [], B_[2], dma_bp(0) + dma_bp(1))
emit_slot([], mf(P0, BF0 + 4, PERM + 4), [], B_[3], dma_bp(2) + dma_bp(3))
emit_slot(["s_waitcnt lgkmcnt(2)"], mf(ACC0, M0, SP), [], B_[4], dma_ea(vEid) + [f"s_xor_b32 s{sEAd}, s{sEAd}, 1024"])
emit_slot([], mf(P0, OH, OB, n=2), [], B_[5])
emit_slot([], mf(ACC0, M0 + 4, SP + 4), [], B_[6])
emit_slot([], None, [f"s_sub_u32 s{sNT}, s{sNT}, 1", f"s_cmp_lg_u32 s{sNT}, 0"], B_[7])
a("s_cbranch_scc1 K2_LOOP")
a(f"""
v_cvt_pk_bf16_f32 v{M1 + 6}, v{T}, v{T + 1}
v_cvt_pk_bf16_f32 v{M1 + 7}, v{T + 2}, v{T + 3}
""")
a(mf(ACC1, M1, SP))
a("s_nop 0")
a(mf(ACC1, M1 + 4, SP + 4))
a.label("K2_DRAINED")
a(f"""
s_waitcnt vmcnt(0) lgkmcnt(0)
s_cmp_lg_u32 s{sMODE}, 0
s_cbranch_scc1 K2_SLOW_NEXT
""")
a.label("K2_EPI")
AF = M0
PD = BF0
for fb, ACC in enumerate((ACC0, ACC1)):
    for i in range(8):
        a(f"v_pk_mul_f32 {v(ACC + 2 * i, 2)}, {v(ACC + 2 * i, 2)}, {s(sLN2, 2)}")
    for i in range(8):
        a(f"v_cvt_pk_bf16_f32 v{AF + 8 * fb + i}, v{ACC + 2 * i}, v{ACC + 2 * i + 1}")
a("s_nop 1")
for st in range(4):
    a(mf(P0, AF + 4 * st, WH2 + 8 * st, 0 if st == 0 else None))
for st in range(4):
    a(mf(P1, AF + 4 * st, WH2 + 8 * st + 4, 0 if st == 0 else None))
for st in range(4):
    a(mf(PD, WX + 4 * st, AF + 4 * st, 0 if st == 0 else None))
a(f"s_mov_b32 s{sT}, {NLOG2E:#x}")
for i in range(6):
    a(f"v_lshlrev_b32 v{DD + i}, 16, v{DD + i}")
    a(f"v_lshlrev_b32 v{HR + i}, 16, v{HR + i}")
a(f"v_lshlrev_b32 v{PR}, 16, v{PR}")
E_ = ACC0
for fb, P in enumerate((P0, P1)):
    for j in range(3):
        a(f"v_add_f32 v{DD + 3 * fb + j}, v{DD + 3 * fb + j}, v{P + 4 * j}")
for i in range(6):
    a(f"v_mul_f32 v{E_ + i}, s{sT}, v{DD + i}")
for i in range(6):
    a(f"v_exp_f32 v{E_ + i}, v{E_ + i}")
for i in range(6):
    a(f"v_add_f32 v{E_ + i}, 1.0, v{E_ + i}")
for i in range(6):
    a(f"v_rcp_f32 v{E_ + i}, v{E_ + i}")
for i in range(6):
    a(f"v_fmac_f32 v{HR + i}, v{DD + i}, v{E_ + i}")
for i in range(6):
    a(f"v_cvt_pk_bf16_f32 v{HR + i}, v{HR + i}, v{HR + i}")
for j in range(3):
    if j == 2:
        a("s_mov_b32 exec_hi, 0")
    for fb in range(2):
        a(f"buffer_store_short v{HR + 3 * fb + j}, v{vOo}, {s(rOUT, 4)}, 0 offen offset:{64 * fb + 256 * j}")
a(f"""
v_add_f32 v{PR}, v{PR}, v{PD}
s_mov_b32 s{sT}, 1280000
v_cvt_pk_bf16_f32 v{PR}, v{PR}, v{PR}
s_mov_b64 exec, 0xeeeee
buffer_store_short v{PR}, v{vPo}, {s(rOUT, 4)}, s{sT} offen
s_endpgm
""")
a.label("K2_SLOW_INIT")
a(f"""
s_mov_b32 s{sMODE}, 1
s_mov_b32 s{sC}, -1
s_mov_b32 s{sJ}, 0
s_mov_b32 s{sEND}, 0
""")
a.label("K2_SLOW_NEXT")
a(f"""
s_add_u32 s{sJ}, s{sJ}, {CAPB}
s_cmp_lt_u32 s{sJ}, s{sEND}
s_cbranch_scc1 K2_SLOW_ROUND
s_add_u32 s{sC}, s{sC}, 1
s_cmp_ge_u32 s{sC}, 250
s_cbranch_scc1 K2_EPI
s_lshl_b32 s{sT}, s{sC}, 8
s_add_u32 s{sT}, s{sT}, s{sBIN}
s_lshl_b32 s{sT}, s{sT}, 2
s_add_u32 s{sT}, s{sT}, {OFF_OFF}
s_load_dword s{sT + 1}, {s(sWS, 2)}, s{sT}
s_waitcnt lgkmcnt(0)
s_and_b32 s{sSTART}, s{sT + 1}, 0xffff
s_lshr_b32 s{sEND}, s{sT + 1}, 16
s_mov_b32 s{sJ}, 0
""")
a.label("K2_SLOW_ROUND")
a("s_barrier")
init_lists(SP)
a(f"""
s_mul_i32 s{sT + 2}, s{sC}, 2560
s_lshl_b32 s{sT + 3}, s{sT + 2}, 2
s_add_u32 s{sT + 3}, s{sT + 3}, s{sSTART}
v_lshl_add_u32 v{t0}, v0, 2, s{sJ}
s_add_u32 s{sT + 4}, s{sJ}, {CAPB}
s_min_u32 s{sT + 4}, s{sT + 4}, s{sEND}
v_cmp_gt_u32 vcc, s{sT + 4}, v{t0}
v_add_u32 v{t0}, s{sT + 3}, v{t0}
global_load_dword v{REC1}, v{t0}, {s(sWS, 2)}
v_mov_b32 v{FOUR}, 4
s_waitcnt vmcnt(0) lgkmcnt(0)
s_barrier
s_and_saveexec_b64 {s(sT + 4, 2)}, vcc
""")
scatter_a(REC1, RA)
a("s_waitcnt lgkmcnt(0)")
scatter_b(REC1, RA, f"s{sT + 2}", t0)
a(f"""
s_mov_b64 exec, -1
s_waitcnt lgkmcnt(0)
s_barrier
v_min_u32 v{t0}, 8, v{vL}
v_lshlrev_b32 v{t1}, 2, v{t0}
ds_read_b32 v{t2}, v{t1} offset:{L_CNT}
s_waitcnt lgkmcnt(0)
s_branch K2_PROCESS
""")
a.label("K2_IDLE")
a(f"""
s_cmp_ge_u32 s{sW}, 5
s_cbranch_scc1 K2_END
buffer_load_dword v{vTmp}, v5, {s(rBP, 4)}, 0 offen
""")
a.label("K2_END")
a("s_endpgm")

a.raw('.section .rodata,"a"')
for name, nv in (("egnn_bin_kernel", 96), ("egnn_edge_kernel", NVGPR)):
    a.raw(".p2align 6")
    a.raw(f".amdhsa_kernel {name}")
    a.raw(f"  .amdhsa_next_free_vgpr {nv}")
    a.raw("  .amdhsa_next_free_sgpr 102")
    a.raw(f"  .amdhsa_accum_offset {nv}")
    a.raw("  .amdhsa_group_segment_fixed_size 0")
    a.raw("  .amdhsa_kernarg_size 88")
    a.raw("  .amdhsa_user_sgpr_count 2")
    a.raw("  .amdhsa_user_sgpr_kernarg_segment_ptr 1")
    a.raw("  .amdhsa_system_sgpr_workgroup_id_x 1")
    a.raw("  .amdhsa_float_denorm_mode_32 3")
    a.raw(".end_amdhsa_kernel")

probs = check_hazards([l for l in a.lines if not l.startswith(";") and not l.startswith(" ")])
for p in probs:
    print(p, file=sys.stderr)
open(sys.argv[1], "w").write(a.text())
print(f"wrote {sys.argv[1]}: {len(a.lines)} lines, {len(probs)} hazards", file=sys.stderr)
```

```python
import sys
src, dst, kern, idx, mode = sys.argv[1], sys.argv[2], int(sys.argv[3]), int(sys.argv[4]), sys.argv[5]
s = open(src).read()
lines = s.split('\n')
i = [k for k, l in enumerate(lines) if l.startswith('; @launch')]
if 'kernel=' not in lines[i[0]]:
    lines[i[0]] = lines[i[0]].replace('@launch', '@launch kernel=standalone__cheap_equivariant_egnn__graph_kernel')
lines[i[-1] + 1:i[-1] + 1] = ['; @launch kernel=diag_kernel grid=(1,1,1) block=(64,1,1) lds=0']
ST = 8 << 20
base0 = int(sys.argv[6]) if len(sys.argv) > 6 else 0
off = ST + (kern << 19) + idx * 4
body = f"""
.globl diag_kernel
.p2align 8
.type diag_kernel,@function
diag_kernel:
    s_cmp_lg_u32 s2, 0
    s_cbranch_scc1 DG_END
    s_load_dwordx2 s[4:5], s[0:1], 80
    v_lshrrev_b32 v1, 3, v0
    v_and_b32 v2, 7, v0
    v_lshl_add_u32 v1, v1, 4, v2
    v_lshlrev_b32 v1, 6, v1
    v_add_u32 v2, {ST + (base0 << 19)}, v1
    v_add_u32 v3, {off}, v1
    v_mov_b32 v4, -1
    v_mov_b32 v5, 0
    v_mov_b32 v6, -1
    v_mov_b32 v9, 0
    s_mov_b32 s6, 0
    s_waitcnt lgkmcnt(0)
DG_L:
    global_load_dword v7, v2, s[4:5]
    global_load_dword v8, v3, s[4:5]
    s_waitcnt vmcnt(0)
    v_min_u32 v4, v4, v7
    v_max_u32 v5, v5, v8
    v_min_u32 v6, v6, v8
    v_add_u32 v9, v9, v8
    v_add_u32 v2, 8192, v2
    v_add_u32 v3, 8192, v3
    s_add_u32 s6, s6, 1
    s_cmp_lt_u32 s6, 16
    s_cbranch_scc1 DG_L
    s_mov_b32 s6, 0
    s_mov_b32 s7, -1
    s_mov_b32 s8, 0
    s_mov_b32 s9, -1
    s_mov_b32 s10, 0
DG_R:
    s_nop 4
    v_readlane_b32 s11, v4, s6
    v_readlane_b32 s12, v5, s6
    v_readlane_b32 s13, v6, s6
    v_readlane_b32 s14, v9, s6
    s_nop 4
    s_min_u32 s7, s7, s11
    s_max_u32 s8, s8, s12
    s_min_u32 s9, s9, s13
    s_add_u32 s10, s10, s14
    s_add_u32 s6, s6, 1
    s_cmp_lt_u32 s6, 64
    s_cbranch_scc1 DG_R
    s_lshl_b32 s11, s7, 10
    s_sub_u32 s10, s10, s11
    s_lshr_b32 s10, s10, 10
    s_sub_u32 s8, s8, s7
    s_sub_u32 s9, s9, s7
    s_mov_b32 s12, {'s8' if mode == 'max' else 's9' if mode == 'min' else 's10' if mode == 'mean' else '0'}
    s_min_u32 s12, s12, 20000
    s_add_u32 s12, s12, 10000
    s_mov_b32 s6, 0
DG_S:
    s_memrealtime s[14:15]
    s_waitcnt lgkmcnt(0)
    s_sub_u32 s14, s14, s7
    s_add_u32 s6, s6, 1
    s_cmp_gt_u32 s6, 1000000
    s_cbranch_scc1 DG_END
    s_cmp_lt_u32 s14, s12
    s_cbranch_scc1 DG_S
DG_END:
    s_endpgm
.section .rodata,"a"
.p2align 6
.amdhsa_kernel diag_kernel
  .amdhsa_next_free_vgpr 16
  .amdhsa_next_free_sgpr 32
  .amdhsa_accum_offset 16
  .amdhsa_group_segment_fixed_size 0
  .amdhsa_kernarg_size 88
  .amdhsa_user_sgpr_count 2
  .amdhsa_user_sgpr_kernarg_segment_ptr 1
  .amdhsa_system_sgpr_workgroup_id_x 1
.end_amdhsa_kernel"""
t = '\n'.join(lines).replace('.section .rodata,"a"', body, 1)
open(dst, 'w').write(t)
```

```python
import re


class Asm:
    def __init__(self):
        self.lines = []

    def __call__(self, s=""):
        for ln in s.split("\n"):
            ln = ln.strip()
            if ln:
                self.lines.append(ln)

    def label(self, name):
        self.lines.append(name + ":")

    def raw(self, s):
        self.lines.append(s)

    def text(self):
        out = []
        for ln in self.lines:
            if ln.endswith(":") or ln.startswith(".") or ln.startswith(";"):
                out.append(ln)
            else:
                out.append("    " + ln)
        return "\n".join(out) + "\n"


def v(a, n=1):
    return f"v{a}" if n == 1 else f"v[{a}:{a + n - 1}]"


def s(a, n=1):
    return f"s{a}" if n == 1 else f"s[{a}:{a + n - 1}]"


_REG = re.compile(r"\b([vs])(\d+)\b|\b([vs])\[(\d+):(\d+)\]|\b(vcc|exec|m0)\b")


def regs_of(op):
    out = set()
    for m in _REG.finditer(op):
        if m.group(1):
            out.add((m.group(1), int(m.group(2))))
        elif m.group(3):
            for i in range(int(m.group(4)), int(m.group(5)) + 1):
                out.add((m.group(3), i))
        else:
            out.add((m.group(6), 0))
    return out


TRANS = ("v_exp_f32", "v_rcp_f32", "v_log_f32", "v_rsq_f32", "v_sqrt_f32", "v_sin_f32", "v_cos_f32")


class Ins:
    def __init__(self, line):
        self.line = line
        code = line.split(";")[0].strip()
        parts = code.split(None, 1)
        self.op = parts[0]
        rest = parts[1] if len(parts) > 1 else ""
        ops = [x.strip() for x in rest.split(",")] if rest else []
        self.ops = ops
        op = self.op
        self.is_mfma = op.startswith("v_mfma")
        self.is_valu = op.startswith("v_") and not self.is_mfma
        self.is_trans = op.replace("_e32", "").replace("_e64", "") in TRANS
        self.is_ds = op.startswith("ds_")
        self.is_vmem = op.startswith(("buffer_", "global_"))
        self.is_salu = op.startswith("s_")
        self.is_dpp = "_dpp" in op or "row_" in rest
        self.lds_dma = self.is_vmem and (" lds" in (" " + rest) or "load_lds" in op)
        self.w = set()
        self.r = set()
        self.states = 1
        if op == "s_nop":
            self.states = int(ops[0], 0) + 1
        if self.is_mfma:
            self.w = regs_of(ops[0])
            self.ra = regs_of(ops[1]) | regs_of(ops[2])
            self.rc = regs_of(ops[3])
            self.r = self.ra | self.rc
            self.passes = 4 if "16x16" in op else 8
        elif self.is_valu:
            self.w = regs_of(ops[0])
            for o in ops[1:]:
                self.r |= regs_of(o)
            if op.startswith(("v_fmac", "v_writelane")) or self.is_dpp:
                self.r |= regs_of(ops[0])
            if op.startswith(("v_add_co", "v_sub_co", "v_addc_co")):
                self.w |= regs_of(ops[1])
            if op.startswith("v_permlane"):
                self.w |= regs_of(ops[1])
                self.r |= regs_of(ops[0])
        elif self.is_ds:
            if "read" in op or "rtn" in op or "permute" in op or "swizzle" in op:
                self.w = regs_of(ops[0])
                for o in ops[1:]:
                    self.r |= regs_of(o)
            else:
                for o in ops:
                    self.r |= regs_of(o)
        elif self.is_vmem:
            if "load" in op and not self.lds_dma:
                self.w = regs_of(ops[0])
                for o in ops[1:]:
                    self.r |= regs_of(o)
            else:
                for o in ops:
                    self.r |= regs_of(o)
            if self.lds_dma:
                self.r.add(("m0", 0))
        elif self.is_salu and ops and not op.startswith(("s_cmp", "s_cbranch", "s_branch", "s_waitcnt", "s_nop", "s_barrier", "s_setprio", "s_bitcmp")):
            self.w = regs_of(ops[0])
            for o in ops[1:]:
                self.r |= regs_of(o)
            if "saveexec" in op:
                self.w.add(("exec", 0))
        self.store_data = set()
        if self.is_vmem and "store" in op and ("x3" in op or "x4" in op):
            self.store_data = regs_of(ops[0]) if op.startswith("buffer_") else regs_of(ops[1])


def need(p, c):
    n = 0
    vw = {x for x in p.w if x[0] == "v"}
    sw = {x for x in p.w if x[0] in ("s", "vcc")}
    if p.is_valu:
        if c.is_mfma and vw & c.r:
            n = max(n, 2)
        if c.is_valu and c.is_dpp and vw & c.r:
            n = max(n, 2)
        if c.op.startswith(("v_readfirstlane", "v_readlane")) and vw & c.r:
            n = max(n, 1)
        if c.op.startswith("v_permlane") and vw & c.r:
            n = max(n, 2)
        if p.is_trans and (c.is_valu or c.is_mfma) and not c.is_trans and vw & c.r:
            n = max(n, 1)
        if c.is_vmem and sw & c.r:
            n = max(n, 5)
        if c.is_valu and sw & c.r:
            n = max(n, 2)
            if c.op.startswith(("v_readlane", "v_writelane")):
                n = max(n, 4)
        if ("op_sel" in p.line and not p.op.startswith("v_pk") and "op_sel:[0,0,0,1]" in p.line or "dst_sel" in p.line) and c.is_valu and vw & c.r:
            n = max(n, 1)
    if p.is_mfma:
        big = {4: 8, 8: 12}[p.passes]
        if c.is_mfma:
            if vw & c.ra:
                n = max(n, big)
            if vw & c.rc and not (c.rc == vw and c.op == p.op):
                n = max(n, {4: 6, 8: 10}[p.passes])
            if vw & c.w and not (vw & c.rc) and False:
                n = max(n, big)
        elif c.is_valu:
            if vw & (c.r | c.w):
                n = max(n, big)
            if {x for x in p.rc if x[0] == "v"} & c.w:
                n = max(n, {4: 3, 8: 7}[p.passes])
        elif c.is_ds or c.is_vmem:
            if vw & (c.r | c.w):
                n = max(n, big)
    if p.is_salu and ("m0", 0) in p.w and c.lds_dma:
        n = max(n, 1)
    if p.store_data and (c.is_valu or c.is_mfma) and p.store_data & c.w:
        n = max(n, 2)
    return n


def check_hazards(lines):
    ins = []
    labels = {}
    for ln in lines:
        t = ln.strip()
        if not t or t.startswith(";") or t.startswith("."):
            continue
        if t.endswith(":"):
            labels[t[:-1]] = len(ins)
            continue
        ins.append(Ins(t))
    problems = []

    def succ(i):
        x = ins[i]
        if x.op in ("s_endpgm", "s_setpc_b64"):
            return []
        if x.op == "s_call_b64":
            return [labels[x.ops[1]], i + 1]
        if x.op == "s_branch":
            return [labels[x.ops[0]]]
        if x.op.startswith("s_cbranch"):
            return [labels[x.ops[0]], i + 1]
        return [i + 1]

    for i, p in enumerate(ins):
        if not (p.is_valu or p.is_mfma or p.is_salu or p.store_data):
            continue
        stack = [(j, 0) for j in succ(i)]
        seen = {}
        while stack:
            j, d = stack.pop()
            if j >= len(ins) or d >= 12:
                continue
            if j in seen and seen[j] <= d:
                continue
            seen[j] = d
            c = ins[j]
            n = need(p, c)
            if n > d:
                problems.append(f"hazard: need {n} have {d}: [{p.line}] -> [{c.line}]")
            for k in succ(j):
                stack.append((k, d + c.states))
    return problems
```

```python
import sys
from asmlib import Asm, v, s, check_hazards

OPT = dict(a.split("=") for a in sys.argv[2:] if "=" in a)


def opt(k, d):
    return int(OPT.get(k, d))


NLOG2E = 0xBFB8AA3B
NLN2 = 0xBF317218
USE_LO = opt("lo", 0)
RSTR = 10240
OFF_OFF = 2752512
OSTR = 4224
AP_OFF = 4194304
TSTRIDE = 1572864
BP_OFF = AP_OFF + TSTRIDE
DP_OFF = AP_OFF + 2 * TSTRIDE
FR_OFF = 8912896
FR_W4H, FR_W4L, FR_WH2, FR_WX, FR_W3 = 0, 2048, 4096, 12288, 12800
NG = 120

a = Asm()
HEADER = open("standalone__cheap_equivariant_egnn__graph.s.ref").read().split("; Override")[0]
K1_LDS = 40960
L_CNT = 0
L_FLAG = 16
L_LS = 256
LSTR = 4112
L_POS = L_LS + 8 * LSTR + 272
L_EA = (L_POS + 60416 + 2047) // 2048 * 2048
L_BF = (L_EA + 16384 + 127) // 128 * 128
L_SP = L_BF + 32768
SPR = 56
L_LUT = L_SP + 8 * 32 * SPR
K2_LDS = L_LUT + 8 * 192
CAP = 448
BIAS = 10240 + 128
assert L_POS % 16 == 0 and L_POS < 65536
a.raw(HEADER.rstrip())
a.raw(f"; @launch kernel=egnn_bin_kernel grid=({256 + NG + 1},1,1) block=(512,1,1) lds={K1_LDS}")
a.raw(f"; @launch kernel=egnn_edge_kernel grid=(256,1,1) block=(512,1,1) lds={K2_LDS}")
a.raw('.amdgcn_target "amdgcn-amd-amdhsa--gfx950"')
a.raw(".text")


def kernel_head(name):
    a.raw(f".globl {name}")
    a.raw(".p2align 8")
    a.raw(f".type {name},@function")
    a.label(name)


def srd(d, base, nrec, off=0, stride=0):
    if off:
        a(f"s_add_u32 {s(d)}, {s(base)}, {off}")
        a(f"s_addc_u32 {s(d + 1)}, {s(base + 1)}, {stride << 16}")
    else:
        a(f"s_mov_b32 {s(d)}, {s(base)}")
        if stride:
            a(f"s_or_b32 {s(d + 1)}, {s(base + 1)}, {stride << 16}")
        else:
            a(f"s_mov_b32 {s(d + 1)}, {s(base + 1)}")
    a(f"s_mov_b32 {s(d + 2)}, {nrec}")
    a(f"s_mov_b32 {s(d + 3)}, 0x20000")


STAMPS = opt("stamps", 0)
ST_OFF = 10 << 20


def stamp(i, vr, cyc=None):
    if STAMPS:
        a("s_memrealtime s[100:101]")
        a("s_waitcnt lgkmcnt(0)")
        a(f"v_writelane_b32 v{vr}, s100, {i}")
        if cyc is not None:
            a("s_memtime s[100:101]")
            a("s_waitcnt lgkmcnt(0)")
            a(f"v_writelane_b32 v{vr}, s100, {cyc}")


def stamp_out(vr, ws, wave, base):
    if STAMPS:
        a("s_mov_b64 exec, 0xffff")
        a("s_lshl_b32 s100, s2, 4")
        a(f"s_add_u32 s100, s100, s{wave}")
        a("s_lshl_b32 s100, s100, 6")
        a(f"s_add_u32 s100, s100, {ST_OFF + base}")
        a(f"v_mbcnt_lo_u32_b32 v{vr - 1}, -1, 0")
        a(f"v_lshl_add_u32 v{vr - 1}, v{vr - 1}, 2, s100")
        a(f"global_store_dword v{vr - 1}, v{vr}, s[{ws}:{ws + 1}]")


K1POL = OPT.get("k1pol", "")
SV1 = 95
kernel_head("egnn_bin_kernel")
stamp(0, SV1)
a(f"""
s_load_dwordx16 s[4:19], s[0:1], 0
s_load_dwordx2 s[20:21], s[0:1], 80
v_lshrrev_b32 v1, 6, v0
s_cmp_ge_u32 s2, 256
v_readfirstlane_b32 s3, v1
s_cbranch_scc1 K1_OTHER
""")
STG = 8704
a(f"""
s_mul_i32 s22, s2, 10000
v_lshlrev_b32 v1, 4, v0
v_add_u32 v2, s22, v1
v_lshlrev_b32 v3, 2, v0
v_pk_mov_b32 v[24:25], 0, 0
v_pk_mov_b32 v[26:27], 0, 0
s_add_u32 s23, s22, 8192
v_min_u32 v21, 451, v0
v_lshl_add_u32 v21, v21, 2, s23
ds_write_b128 v1, v[24:27]
ds_write_b32 v3, v24 offset:8192
s_waitcnt lgkmcnt(0)
global_load_dwordx4 v[4:7], v2, s[12:13]
global_load_dword v8, v21, s[12:13]
global_load_dwordx4 v[10:13], v2, s[10:11]
global_load_dword v14, v21, s[10:11]
s_barrier
v_cmp_gt_u32 vcc, 452, v0
v_mov_b32 v21, 4
v_lshlrev_b32 v22, 22, v0
v_add_u32 v9, 0x800, v0
v_lshlrev_b32 v9, 20, v9
v_and_b32 v23, 63, v0
s_mov_b64 s[26:27], vcc
s_mov_b32 s24, 429497
s_mov_b32 s25, 0x1fffff
s_mov_b32 s28, 0x100000
s_mov_b32 s29, 0x200000
s_mov_b32 s30, 0x300000
s_movk_i32 s31, 0x1ffc
s_mul_i32 s22, s2, {RSTR}
v_add_u32 v2, s22, v1
s_lshl_b32 s32, 0xfe, s3
s_and_b32 s32, s32, 0xff
s_mov_b32 s33, 0
s_mul_i32 s22, s2, {OSTR}
s_add_u32 s22, s22, {OFF_OFF}
v_lshl_add_u32 v3, v0, 3, s22
v_lshlrev_b32 v23, 2, v23
s_lshl_b32 s22, s3, 2
v_mov_b32 v20, s22
""")
stamp(1, SV1)
a("s_waitcnt vmcnt(2)")
stamp(2, SV1)
for k in range(5):
    a(f"v_mul_u32_u24 v{4 + k}, s24, v{4 + k}")
    a(f"v_lshrrev_b32 v{15 + k}, 19, v{4 + k}")
    a(f"v_and_b32 v{15 + k}, s31, v{15 + k}")
for k in range(5):
    if k == 4:
        a("s_mov_b64 exec, s[26:27]")
    a(f"ds_add_rtn_u32 v{32 + k}, v{15 + k}, v21")
a("s_mov_b64 exec, -1")
for k in range(5):
    a(f"""
    v_and_b32 v24, s25, v{4 + k}
    v_mul_u32_u24 v24, 0x4e2, v24
    v_lshrrev_b32 v24, 29, v24
    v_bfe_u32 v{4 + k}, v{4 + k}, 21, 3
    v_lshl_or_b32 v{4 + k}, v24, 3, v{4 + k}
    v_lshl_or_b32 v{4 + k}, v{4 + k}, 14, v{22 if k < 4 else 9}
    """)
stamp(3, SV1)
a("""
s_waitcnt lgkmcnt(0)
s_barrier""")
stamp(4, SV1)
a("ds_read_b128 v[24:27], v1")
for k in range(5):
    a(f"v_and_b32_sdwa v{44 + k}, 28, v{15 + k} dst_sel:DWORD src0_sel:DWORD src1_sel:BYTE_1")
a("""
s_waitcnt lgkmcnt(0)
v_add_u32 v28, v24, v25
v_add_u32 v29, v28, v26
v_add_u32 v30, v29, v27
v_mov_b32 v31, v30
s_waitcnt vmcnt(0)
s_nop 0
""")
fill = ["v_or_b32 v4, v4, v10", "v_or3_b32 v5, v5, v11, s28", "v_or3_b32 v6, v6, v12, s29", "v_or3_b32 v7, v7, v13, s30", "v_or_b32 v8, v8, v14", "s_nop 0"]
for n, ctl in enumerate(("row_shr:1 row_mask:0xf", "row_shr:2 row_mask:0xf", "row_shr:4 row_mask:0xf", "row_shr:8 row_mask:0xf",
                         "row_bcast:15 row_mask:0xa", "row_bcast:31 row_mask:0xc")):
    a(f"v_add_u32_dpp v31, v31, v31 {ctl} bank_mask:0xf")
    if n < 5:
        a(fill[n])
        a("s_nop 0")
a("""
v_sub_u32 v40, v31, v30
v_readlane_b32 s22, v31, 63
v_add_u32 v41, v40, v24
v_add_u32 v42, v40, v28
v_add_u32 v43, v40, v29
v_mov_b32 v30, s22
ds_write_b128 v1, v[40:43]
s_mov_b64 exec, s[32:33]
ds_add_u32 v23, v30 offset:8192
s_mov_b64 exec, -1
v_lshl_or_b32 v40, v41, 16, v40
v_lshl_or_b32 v41, v43, 16, v42
s_waitcnt lgkmcnt(0)
s_barrier
ds_read_b32 v20, v20 offset:8192
""")
for k in range(5):
    a(f"ds_read_b32 v{10 + k}, v{15 + k}")
    a(f"ds_read_b32 v{44 + k}, v{44 + k} offset:8192")
a(f"""
s_waitcnt lgkmcnt(10)
v_lshl_or_b32 v20, v20, 16, v20
v_add_u32 v40, v40, v20
v_add_u32 v41, v41, v20
v_mov_b32 v42, 10000
global_store_dwordx2 v3, v[40:41], s[20:21] {K1POL}
s_waitcnt lgkmcnt(0)
""")
for k in range(5):
    a(f"v_add3_u32 v{10 + k}, v{10 + k}, v{32 + k}, v{44 + k}")
for k in range(5):
    if k == 4:
        a("s_mov_b64 exec, s[26:27]")
    a(f"ds_write_b32 v{10 + k}, v{4 + k} offset:{STG}")
a("s_mov_b64 exec, -1")
stamp(5, SV1)
a("""
s_waitcnt lgkmcnt(0)
s_barrier""")
stamp(6, SV1)
a(f"""
ds_read_b128 v[4:7], v1 offset:{STG}
s_cmp_ge_u32 s3, 2
s_cbranch_scc1 K1_ONE
ds_read_b128 v[8:11], v1 offset:{STG + 8192}
v_add_u32 v12, 0x2000, v2
s_waitcnt lgkmcnt(0)
global_store_dwordx4 v12, v[8:11], s[20:21] {K1POL}
""")
a.label("K1_ONE")
a(f"""
s_waitcnt lgkmcnt(0)
global_store_dwordx4 v2, v[4:7], s[20:21] {K1POL}
s_cmp_lg_u32 s3, 7
s_cbranch_scc1 K1_SEND
s_mov_b64 exec, 1
global_store_dword v3, v42, s[20:21] offset:512 {K1POL}
""")
a.label("K1_SEND")
if STAMPS:
    a("s_waitcnt vmcnt(0)")
stamp(7, SV1)
stamp_out(SV1, 20, 3, 0)
a("s_endpgm")

a.label("K1_OTHER")
a(f"""
s_cmp_ge_u32 s2, {256 + NG}
s_cbranch_scc1 K1_FRAG
s_sub_u32 s22, s2, 256
s_mul_i32 s23, s22, 1639
s_lshr_b32 s23, s23, 16
s_mul_i32 s28, s23, 40
s_sub_u32 s22, s22, s28
s_lshl_b32 s22, s22, 15
s_lshl_b32 s28, s3, 12
s_add_u32 s22, s22, s28
v_and_b32 v1, 63, v0
s_and_b32 s29, s23, 1
s_lshl_b32 s29, s29, 13
v_lshl_add_u32 v2, v0, 4, s29
v_lshrrev_b32 v4, 4, v1
v_xor_b32 v4, v4, v1
v_and_b32 v4, 7, v4
v_lshlrev_b32 v4, 4, v4
v_lshrrev_b32 v5, 3, v1
v_lshl_or_b32 v4, v5, 7, v4
v_xor_b32 v5, 64, v4
s_lshl_b32 m0, s3, 10
s_waitcnt lgkmcnt(0)
s_cmp_eq_u32 s23, 2
s_cselect_b32 s14, s18, s14
s_cselect_b32 s15, s19, s15
s_cselect_b32 s30, 1.0, {NLOG2E:#x}
s_mov_b32 s31, s30
global_load_lds_dwordx4 v2, s[14:15]
s_add_u32 m0, s28, 8192
""")
srd(24, 4, 1280000)
a(f"""
buffer_load_dwordx4 v4, s[24:27], s22 offen lds
buffer_load_dwordx4 v5, s[24:27], s22 offen offset:1024 lds
buffer_load_dwordx4 v4, s[24:27], s22 offen offset:2048 lds
buffer_load_dwordx4 v5, s[24:27], s22 offen offset:3072 lds
v_lshrrev_b32 v4, 5, v1
v_lshlrev_b32 v5, 3, v4
v_bfe_u32 v6, v1, 2, 2
v_add_u32 v5, v5, v6
v_lshlrev_b32 v5, 7, v5
v_bfe_u32 v6, v1, 4, 1
v_lshl_or_b32 v5, v6, 5, v5
v_and_b32 v6, 3, v1
v_lshl_or_b32 v5, v6, 3, v5
v_and_b32 v6, 31, v1
v_lshrrev_b32 v7, 1, v6
v_xor_b32 v7, v7, v4
v_and_b32 v7, 7, v7
v_lshlrev_b32 v7, 4, v7
v_lshl_or_b32 v7, v6, 7, v7
v_add_u32 v7, s28, v7
v_xor_b32 v8, 32, v7
v_xor_b32 v9, 64, v7
v_xor_b32 v10, 0x60, v7
v_lshlrev_b32 v11, 2, v6
v_lshl_or_b32 v11, v4, 9, v11
s_mul_i32 s23, s23, {TSTRIDE}
s_add_u32 s23, s23, {AP_OFF}
s_add_u32 s24, s20, s23
s_addc_u32 s25, s21, 0
s_waitcnt vmcnt(0)
s_barrier
""")
HB, WA, D0, D1 = 12, 28, 60, 76
for st in range(4):
    a(f"ds_read_b128 {v(HB + 4 * st, 4)}, v{7 + st} offset:8192")
    for u in range(2):
        a(f"ds_read_b64_tr_b16 {v(WA + 4 * st + 2 * u, 2)}, v5 offset:{(16 * st + 4 * u) * 128}")
for st in range(4):
    a(f"s_waitcnt lgkmcnt({9 - st})")
    a(f"v_mfma_f32_32x32x16_bf16 {v(D0, 16)}, {v(HB + 4 * st, 4)}, {v(WA + 4 * st, 4)}, {'0' if st == 0 else v(D0, 16)}")
    for u in range(2):
        a(f"ds_read_b64_tr_b16 {v(WA + 16 + 4 * st + 2 * u, 2)}, v5 offset:{(16 * st + 4 * u) * 128 + 64}")
for st in range(4):
    a(f"s_waitcnt lgkmcnt({6 - 2 * st})")
    a(f"v_mfma_f32_32x32x16_bf16 {v(D1, 16)}, {v(HB + 4 * st, 4)}, {v(WA + 16 + 4 * st, 4)}, {'0' if st == 0 else v(D1, 16)}")
a("s_nop 3")
for i in range(16):
    a(f"v_pk_mul_f32 {v(D0 + 2 * i, 2)}, {v(D0 + 2 * i, 2)}, s[30:31]")
for r in range(16):
    a(f"v_cvt_pk_bf16_f32 v{D0 + r}, v{D0 + r}, v{D1 + r}")
for r in range(16):
    a(f"buffer_store_dword v{D0 + r}, v11, s[24:27], s22 offen offset:{((r & 3) + 8 * (r >> 2)) * 128} {K1POL}")
if STAMPS:
    a("s_waitcnt vmcnt(0)")
stamp(7, SV1)
stamp_out(SV1, 20, 3, 0)
a("s_endpgm")
a.label("K1_FRAG")
a(f"""
s_cmp_lg_u32 s2, {256 + NG}
s_cbranch_scc1 K1_END
v_and_b32 v1, 3, v0
v_bfe_u32 v2, v0, 2, 5
v_bfe_u32 v3, v0, 7, 1
v_bfe_u32 v4, v0, 8, 1
v_lshrrev_b32 v6, 1, v1
v_and_b32 v7, 1, v1
v_lshl_or_b32 v5, v6, 2, v7
v_lshl_or_b32 v6, v3, 1, v5
v_lshl_or_b32 v8, v4, 5, v2
v_lshlrev_b32 v8, 1, v8
v_lshl_or_b32 v6, v6, 7, v8
v_add_u32 v6, 8192, v6
v_add_u32 v7, 4096, v6
v_and_b32 v8, 30, v2
v_lshl_or_b32 v8, v4, 5, v8
v_and_b32 v9, 1, v2
v_lshl_or_b32 v8, v9, 6, v8
v_lshlrev_b32 v9, 1, v1
v_lshl_or_b32 v9, v3, 3, v9
v_lshl_or_b32 v9, v9, 7, v8
v_add_u32 v9, {129 * 128}, v9
v_bfe_u32 v10, v0, 2, 1
v_lshl_or_b32 v5, v10, 1, v5
v_bfe_u32 v10, v0, 3, 2
v_lshl_or_b32 v5, v10, 3, v5
v_lshlrev_b32 v10, 1, v5
v_lshlrev_b32 v12, 2, v0
v_add_u32 v12, {FR_OFF}, v12
s_mov_b32 s22, {NLOG2E:#x}
s_waitcnt lgkmcnt(0)
""")
for i in range(4):
    a(f"global_load_ushort v{16 + 2 * i}, v6, s[18:19] offset:{i * 1024}")
    a(f"global_load_ushort v{17 + 2 * i}, v7, s[18:19] offset:{i * 1024}")
a(f"""
global_load_ushort v24, v9, s[14:15]
global_load_ushort v25, v9, s[14:15] offset:128
global_load_ushort v26, v10, s[16:17]
global_load_ushort v31, v10, s[16:17] offset:64
v_add_u32 v13, {FR_WH2}, v12
v_add_u32 v14, {FR_WH2 + 4096}, v12
v_add_u32 v15, {FR_WX}, v12
s_waitcnt vmcnt(0)
""")
for i in range(4):
    a(f"v_lshl_or_b32 v{16 + 2 * i}, v{17 + 2 * i}, 16, v{16 + 2 * i}")
    a(f"global_store_dword v{13 + (i >> 1)}, v{16 + 2 * i}, s[20:21] offset:{(i & 1) * 2048}")
a(f"""
v_lshlrev_b32 v24, 16, v24
v_lshlrev_b32 v25, 16, v25
v_mul_f32 v27, s22, v24
v_mul_f32 v28, s22, v25
v_cvt_pk_bf16_f32 v29, v27, v28
v_lshl_or_b32 v26, v31, 16, v26
global_store_dword v12, v29, s[20:21] offset:{FR_W4H}
""")
if USE_LO:
    a(f"""
    v_lshlrev_b32 v27, 16, v29
    v_and_b32 v28, 0xffff0000, v29
    v_fma_f32 v27, v24, s22, -v27
    v_fma_f32 v28, v25, s22, -v28
    v_cvt_pk_bf16_f32 v30, v27, v28
    global_store_dword v12, v30, s[20:21] offset:{FR_W4L}
    """)
a(f"""
s_cmp_lg_u32 s3, 0
s_cbranch_scc1 K1_END
global_store_dword v15, v26, s[20:21]
""")
a.label("K1_END")
a("s_endpgm")

sW = 3
sH, sPOS, sEAT, sWE = 4, 6, 8, 14
sOUT, sWS = 20, 22
rBP, rEA, rAP, rPOS, rH, rOUT = 24, 28, 32, 36, 40, 44
sBF = 48
sI1 = 52
sI2 = 54
sLN2 = 56
sRET = 58
sM = 60
sBIN, sN0, sMODE, sNT, sEAd, sG, sNL, sSZ = 76, 77, 78, 79, 80, 81, 82, 83
sC, sJ, sEND, sQ = 84, 85, 86, 87
sR2 = 88
sT = 92

vL = 1
pS1, pS4, pE, vEArd = 2, 3, 4, 5
vBF = 6
vI = 10
vEi = 18
vTR, vLUTb, vSb, vSaddr, vPc, vKf, vCf = 20, 21, 22, 23, 24, 25, 26
vRec, vPa, vLa, vAs, vBs, vZ, vQ = 27, 28, 29, 30, 31, 32, 33
cS1, cS4, cE, cEA = 34, 35, 36, 37
cKa, cKb = 38, 39
OH = 40
T = 44
EA = 48
P0, P1 = 52, 68
ACC0, ACC1 = 84, 100
M0, M1 = 116, 124
BF0, BF1 = 132, 140
SP = 148
PERM = 156
W4H, W4L = 164, 172
WH2 = 180
WX = 212
DD = 228
HR = 234
PR = 240
vOo, vPo, cPo = 241, 242, 243
OB = 244
W3 = 248
vST = 255
NVGPR = 256

e_, hf_, t0, t1, t2, t3 = BF0, BF0 + 1, BF0 + 2, BF0 + 3, BF0 + 4, BF0 + 5
vJ, vL16, vCh, vDT, vDS = BF0 + 6, BF0 + 7, BF0 + 8, BF0 + 9, BF0 + 10
vCB = BF0 + 12
vRB = BF0 + 14
ENT = SP
vJA = SP + 4
vRM = SP + 6
REC1, REC2 = P0, P0 + 8
RA = P1
PAIR = WH2


def init_lists(t):
    a(f"""
    s_mul_i32 s{sT}, s{sW}, {LSTR}
    v_lshl_add_u32 v{t + 4}, v{vL}, 4, s{sT}
    v_mov_b32 v{t}, 0xa2710
    v_mov_b32 v{t + 1}, v{t}
    v_mov_b32 v{t + 2}, v{t}
    v_mov_b32 v{t + 3}, v{t}
    s_lshl_b32 s{sT + 1}, s{sW}, 1
    s_lshr_b32 s{sT}, s{sT}, 1
    s_add_u32 s{sT}, s{sT}, {BIAS}
    v_mov_b32 v{t + 5}, s{sT + 1}
    v_mov_b32 v{t + 6}, s{sT}
    ds_write_b128 v{t + 4}, {v(t, 4)} offset:{L_LS}
    ds_write_b128 v{t + 4}, {v(t, 4)} offset:{L_LS + 1024}
    ds_write_b128 v{t + 4}, {v(t, 4)} offset:{L_LS + 2048}
    ds_write_b128 v{t + 4}, {v(t, 4)} offset:{L_LS + 3072}
    ds_write_b16 v{t + 5}, v{t + 6} offset:{L_CNT}
    ds_write_b32 v{vZ}, v{vZ} offset:{L_FLAG}
    ds_write_b32 v{vZ}, v{vZ} offset:{L_POS - 4}
    """)


def pos_dma():
    a(f"s_add_u32 m0, s{sT + 4}, {L_POS}")
    a("s_nop 0")
    a(f"buffer_load_dwordx4 v{vL16}, {s(rPOS, 4)}, s{sT + 4} offen lds")
    a(f"s_add_u32 s{sT + 4}, s{sT + 4}, 8192")


kernel_head("egnn_edge_kernel")
stamp(0, vST, 12)
a(f"""
s_cmp_ge_u32 s2, 256
s_cbranch_scc1 K2_END
s_load_dwordx2 s[22:23], s[0:1], 80
s_load_dwordx16 s[4:19], s[0:1], 0
s_load_dwordx2 s[20:21], s[0:1], 64
v_lshrrev_b32 v2, 6, v0
v_and_b32 v{vL}, 63, v0
v_readfirstlane_b32 s{sW}, v2
s_and_b32 s{sBIN}, s2, 7
s_lshl_b32 s{sBIN}, s{sBIN}, 5
s_lshr_b32 s{sT + 2}, s2, 3
s_add_u32 s{sBIN}, s{sBIN}, s{sT + 2}
v_mov_b32 v{vZ}, 0
v_lshrrev_b32 v{vCh}, 2, v0
v_and_b32 v{vJ}, 3, v0
s_lshl_b32 s{sT + 1}, s{sBIN}, 4
s_add_u32 s{sT + 1}, s{sT + 1}, {OFF_OFF}
v_lshl_add_u32 v{t0}, v{vJ}, 2, s{sT + 1}
s_movk_i32 s{sT + 1}, {OSTR}
v_mad_u32_u24 v{t0}, v{vCh}, s{sT + 1}, v{t0}
v_add_u32 v{t1}, {128 * OSTR}, v{t0}
v_lshlrev_b32 v{vL16}, 4, v{vL}
""")
init_lists(P1)
a(f"""
s_waitcnt lgkmcnt(0)
global_load_dwordx2 {v(ENT, 2)}, v{t0}, {s(sWS, 2)}
global_load_dwordx2 {v(ENT + 2, 2)}, v{t1}, {s(sWS, 2)}
s_barrier
""")
stamp(1, vST)
srd(rPOS, sPOS, 60000)
a(f"""
v_add_u32 v{t0}, {FR_OFF}, v{vL16}
s_lshl_b32 s{sT + 4}, s{sW}, 10
global_load_dwordx4 {v(W4H, 4)}, v{t0}, {s(sWS, 2)} offset:{FR_W4H}
global_load_dwordx4 {v(W4H + 4, 4)}, v{t0}, {s(sWS, 2)} offset:{FR_W4H + 1024}
""")
if USE_LO:
    a(f"""
    global_load_dwordx4 {v(W4L, 4)}, v{t0}, {s(sWS, 2)} offset:{FR_W4L}
    global_load_dwordx4 {v(W4L + 4, 4)}, v{t0}, {s(sWS, 2)} offset:{FR_W4L + 1024}
    """)
NP1 = opt("np1", 4)
for k in range(NP1):
    pos_dma()
a(f"""
s_cmp_ge_u32 s{sW}, 3
s_cbranch_scc1 K2_NOPOS
""")
pos_dma()
a.label("K2_NOPOS")
N_AFTER_OFF = (4 if USE_LO else 2) + NP1
a(f"""
v_and_b32 v{e_}, 31, v{vL}
v_lshrrev_b32 v{hf_}, 5, v{vL}
v_lshlrev_b32 v{vPc}, 2, v{hf_}
s_movk_i32 s{sT}, {RSTR}
v_mul_u32_u24 v{vRB}, s{sT}, v{vCh}
v_add_u32 v{vRB}, s{sT}, v{vRB}
v_add_u32 v{vRB + 1}, {128 * RSTR}, v{vRB}
v_mul_u32_u24 v{vCB}, 2500, v{vCh}
v_add_u32 v{vCB + 1}, {128 * 2500}, v{vCB}
v_lshlrev_b32 v{vCh}, 2, v{vJ}
v_lshlrev_b32 v{vJ}, 4, v{vJ}
v_subrev_u32 v{vJ}, s{sT}, v{vJ}
s_lshl_b32 s{sT}, s{sW}, 11
s_add_u32 s{sEAd}, s{sT}, {L_EA}
v_lshl_add_u32 v{vDT}, v{vL}, 2, s{sEAd}
v_and_b32 v{vDS}, -16, v{vDT}
v_lshrrev_b32 v{t0}, 3, v{vL}
v_lshlrev_b32 v{cS4}, 3, v{t0}
v_mul_i32_i24 v{cKa}, {1 - LSTR}, v{t0}
v_and_b32 v{t1}, 7, v{vL}
v_mul_i32_i24 v{cKb}, {1 - LSTR}, v{t1}
v_lshlrev_b32 v{T}, 1, v{t0}
v_lshlrev_b32 v{T + 1}, 1, v{t1}
v_lshlrev_b32 v{cS1}, 3, v{e_}
s_sub_u32 s{sT + 5}, 11, s{sW}
s_cmp_lt_u32 s{sW}, 4
s_cselect_b32 s{sT + 5}, s{sW}, s{sT + 5}
""")
srd(rBP, sWS, 10000, BP_OFF, 128)
srd(rAP, sWS, 1280000, AP_OFF)
stamp(2, vST)
a(f"s_waitcnt vmcnt({N_AFTER_OFF})")
stamp(3, vST)
for i in range(2):
    a(f"v_mov_b32_dpp v{vJA + i}, v{ENT + 2 * i} quad_perm:[0,0,0,0] row_mask:0xf bank_mask:0xf")
    a(f"v_mov_b32_dpp v{vRM + i}, v{ENT + 2 * i + 1} quad_perm:[3,3,3,3] row_mask:0xf bank_mask:0xf")
for i in range(2):
    a(f"v_add_u32_sdwa v{vJA + i}, v{vJA + i}, v{vJ} dst_sel:DWORD src0_sel:WORD_0 src1_sel:DWORD")
    a(f"v_alignbit_b32 v{ENT + 2 * i + 1}, v{ENT + 2 * i + 1}, v{ENT + 2 * i}, 16")
for i in range(2):
    a(f"v_add_u32 v{vRB + i}, v{vRB + i}, v{vJA + i}")
    a(f"v_pk_sub_u16 v{ENT + 2 * i + 1}, v{ENT + 2 * i + 1}, v{ENT + 2 * i}")
a(f"""
global_load_dwordx4 {v(REC1, 4)}, v{vRB}, {s(sWS, 2)}
global_load_dwordx4 {v(REC1 + 4, 4)}, v{vRB + 1}, {s(sWS, 2)}
global_load_dwordx4 {v(REC2, 4)}, v{vRB}, {s(sWS, 2)} offset:64
global_load_dwordx4 {v(REC2 + 4, 4)}, v{vRB + 1}, {s(sWS, 2)} offset:64
ds_add_rtn_u32 v{ENT + 1}, v{vCh}, v{ENT + 1} offset:{L_CNT}
ds_add_rtn_u32 v{ENT + 3}, v{vCh}, v{ENT + 3} offset:{L_CNT}
v_sub_u32_sdwa v{vRM}, v{vRM}, v{vJA} dst_sel:DWORD src0_sel:WORD_0 src1_sel:DWORD
v_sub_u32_sdwa v{vRM + 1}, v{vRM + 1}, v{vJA + 1} dst_sel:DWORD src0_sel:WORD_0 src1_sel:DWORD
s_movk_i32 s{sT}, {RSTR}
v_subrev_u32 v{vRM}, s{sT}, v{vRM}
v_subrev_u32 v{vRM + 1}, s{sT}, v{vRM + 1}
v_max_i32 v{t0}, v{vRM}, v{vRM + 1}
v_cmp_lt_i32 vcc, 0x80, v{t0}
s_cbranch_vccz K2_NOFLAG
v_mov_b32 v{t0}, 1
ds_write_b32 v{vZ}, v{t0} offset:{L_FLAG}
""")
a.label("K2_NOFLAG")
for i in range(2):
    for k in range(4):
        a(f"v_cmp_lt_i32 {s(sM + 2 * (4 * i + k), 2)}, {4 * k}, v{vRM + i}")
    a(f"v_cmp_lt_i32 {s(sR2 + 2 * i, 2)}, 64, v{vRM + i}")
a(f"""
s_waitcnt lgkmcnt(0)
s_barrier
ds_read_u16 v{t1}, v{T} offset:{L_CNT}
ds_read_u16 v{t2}, v{T + 1} offset:{L_CNT}
ds_read_b32 v{t3}, v{vZ} offset:{L_FLAG}
v_pk_sub_u16 v{ENT + 1}, v{ENT + 1}, v{ENT}
v_pk_sub_u16 v{ENT + 3}, v{ENT + 3}, v{ENT + 2}
ds_write2st64_b32 v{vDT}, v{ENT + 1}, v{ENT + 3} offset1:1
; own group for the LUT: n0(8*bin + w)
s_lshl_b32 s{sT}, s{sBIN}, 3
s_add_u32 s{sT}, s{sT}, s{sW}
s_mul_i32 s{sT}, s{sT}, 625
s_add_u32 s{sT}, s{sT}, 127
s_lshr_b32 s{sT}, s{sT}, 7
v_add_u32 v{T}, s{sT}, v{e_}
v_mad_u32_u24 v{T}, v{T}, 6, v{vPc}
v_add_u32 v{T + 1}, -2, v{T}
v_and_b32 v{T + 2}, 1, v{e_}
v_lshlrev_b32 v{T + 2}, 6, v{T + 2}
v_and_or_b32 v{T + 2}, v{e_}, 30, v{T + 2}
v_add_u32 v{T + 2}, 0x4000, v{T + 2}
s_waitcnt lgkmcnt(1)
v_lshl_add_u32 v{t1}, v{t1}, 1, v{cKa}
v_lshl_add_u32 v{t2}, v{t2}, 1, v{cKb}
v_cmp_gt_u32 vcc, v{t2}, v{t1}
v_lshl_add_u32 v{t3}, v{t3}, 20, v{t1}
s_mov_b32 s{sMODE}, 0
v_lshrrev_b64 {v(ENT, 2)}, v{cS4}, vcc
v_cmp_lt_u32 {s(sT + 6, 2)}, s{sT + 6}, v{t3}
v_and_b32 v{ENT}, 0xff, v{ENT}
v_bcnt_u32_b32 v{ENT}, v{ENT}, 0
v_cmp_eq_u32 vcc, s{sT + 5}, v{ENT}
s_ff1_i32_b64 s{sG}, vcc
s_cmp_lg_u64 {s(sT + 6, 2)}, 0
s_cselect_b32 s{sMODE}, 1, 0
s_lshl_b32 s{sT}, s{sW}, 3
s_cmp_lg_u32 s{sMODE}, 0
s_cselect_b32 s{sG}, s{sT}, s{sG}
""".replace(f"s_mov_b32 s{sMODE}, 0\n", f"s_mov_b32 s{sT + 6}, {2 * BIAS + 8 * CAP + 7}\n"))
a(f"""
v_readlane_b32 s{sNT}, v{t1}, s{sG}
s_lshr_b32 s{sG}, s{sG}, 3
s_lshl_b32 s{sT}, s{sBIN}, 3
s_add_u32 s{sT}, s{sT}, s{sG}
s_mul_i32 s{sT}, s{sT}, 625
s_add_u32 s{sN0}, s{sT}, 127
s_lshr_b32 s{sN0}, s{sN0}, 7
s_add_u32 s{sSZ}, s{sT}, {127 + 625}
s_lshr_b32 s{sSZ}, s{sSZ}, 7
s_sub_u32 s{sSZ}, s{sSZ}, s{sN0}
s_lshl_b32 s{sT}, s{sN0}, 7
v_lshlrev_b32 v{vOo}, 1, v{e_}
v_lshl_or_b32 v{vOo}, v{hf_}, 7, v{vOo}
v_add_u32 v{vOo}, s{sT}, v{vOo}
s_mul_i32 s{sT + 2}, s{sT + 2}, 320
s_mul_i32 s{sT}, s{sW}, 40
s_add_u32 s{sT + 2}, s{sT + 2}, s{sT}
v_add_u32 v{T + 3}, s{sT + 2}, v{vL}
buffer_load_ushort v{M1 + 2}, v{T + 1}, {s(rPOS, 4)}, 0 offen
buffer_load_ushort v{M1 + 3}, v{T}, {s(rPOS, 4)}, 0 offen
global_load_ushort v{W3}, v{T + 2}, {s(sWE, 2)}
global_load_ushort v{W3 + 1}, v{T + 2}, {s(sWE, 2)} offset:32
""")
for fb in range(2):
    for j in range(3):
        a(f"buffer_load_ushort v{M0 + 3 * fb + j}, v{vOo}, {s(rAP, 4)}, 0 offen offset:{64 * fb + 256 * j}")
for k in range(7 - NP1):
    pos_dma()
a(f"""
s_mov_b32 exec_hi, {0xff if opt("warm", 1) else 0}
buffer_load_dword v{vQ}, v{T + 3}, {s(rBP, 4)}, 0 idxen
s_mov_b32 exec_hi, -1
""")
N_AFTER_REC = 10 + 7 - NP1 + 1
srd(rEA, sEAT, 0 if opt("noea", 0) else 640000, 0, 32)
srd(rH, sH, 1280000)
srd(rOUT, sOUT, 1340000)
a(f"""
s_lshl_b32 s{sT}, s{sW}, 12
s_add_u32 s{sBF}, s{sT}, {L_BF}
s_add_u32 s{sBF + 1}, s{sBF}, 1024
s_add_u32 s{sBF + 2}, s{sBF}, 2048
s_add_u32 s{sBF + 3}, s{sBF}, 3072
v_lshrrev_b32 v{t0}, 1, v{e_}
v_xor_b32 v{t0}, v{t0}, v{hf_}
v_and_b32 v{t0}, 7, v{t0}
v_lshlrev_b32 v{t0}, 4, v{t0}
v_lshl_or_b32 v{t0}, v{e_}, 7, v{t0}
v_add_u32 v{vBF}, s{sBF}, v{t0}
v_xor_b32 v{vBF + 1}, 32, v{vBF}
v_xor_b32 v{vBF + 2}, 64, v{vBF}
v_xor_b32 v{vBF + 3}, 0x60, v{vBF}
v_xor_b32 v{t0}, v{vL16}, v{vL}
v_and_b32 v{vI + 1}, 0x70, v{t0}
v_xor_b32 v{vI + 3}, 64, v{vI + 1}
v_mov_b32 v{vI + 5}, v{vI + 1}
v_mov_b32 v{vI + 7}, v{vI + 3}
v_and_b32 v{vEi + 1}, 16, v{t0}
s_mul_i32 s{sT}, s{sW}, {32 * SPR}
s_add_u32 s{sT}, s{sT}, {L_SP}
v_bfe_u32 v{t0}, v{vL}, 2, 2
v_or_b32 v{t0}, v{vPc}, v{t0}
v_mul_u32_u24 v{t0}, {SPR}, v{t0}
v_bfe_u32 v{t1}, v{vL}, 4, 1
v_and_b32 v{t2}, 3, v{vL}
v_lshl_or_b32 v{t1}, v{t1}, 2, v{t2}
v_min_u32 v{t1}, 5, v{t1}
v_lshl_add_u32 v{t0}, v{t1}, 3, v{t0}
v_add_u32 v{vTR}, s{sT}, v{t0}
v_mad_u32_u24 v{t0}, v{e_}, {SPR}, v{vPc}
v_add_u32 v{vSb}, s{sT}, v{t0}
v_cvt_f32_u32 v{vKf}, v{hf_}
v_add_f32 v{vCf}, -1.0, v{vKf}
v_mov_b32 v{vAs}, 0
v_mov_b32 v{vBs}, 0
v_lshrrev_b32 v{t0}, 3, v{vL}
v_xor_b32 v{t0}, v{t0}, v{hf_}
v_and_b32 v{t2}, 1, v{t0}
v_lshlrev_b32 v{t0}, 4, v{t2}
v_lshl_or_b32 v{cEA}, v{e_}, 5, v{t0}
v_lshlrev_b32 v{t0}, 2, v{vL}
v_or_b32 v{cE}, 4, v{t0}
v_lshrrev_b32 v{t0}, 2, v{e_}
v_sub_u32 v{t0}, v{e_}, v{t0}
s_mul_i32 s{sT}, s{sN0}, 3
s_sub_u32 s{sT}, s{sT}, 1
v_add_lshl_u32 v{vPo}, v{t0}, s{sT}, 1
v_and_b32 v{t0}, 1, v{e_}
v_lshlrev_b32 v{t0}, 4, v{t0}
v_mov_b32 v{t3}, 0x3f80
v_lshlrev_b32 v{t0}, v{t0}, v{t3}
v_bfe_u32 v{t1}, v{e_}, 1, 2
v_lshl_or_b32 v{t1}, v{t2}, 3, v{t1}
v_lshrrev_b32 v{t2}, 4, v{e_}
v_lshl_or_b32 v{t1}, v{t2}, 2, v{t1}
s_movk_i32 s{sI1}, {0 if opt("bench", 0) else 256}
s_mov_b32 s{sI1 + 1}, s{sI1}
s_mov_b32 s{sI2}, s{sI1}
s_mov_b32 s{sLN2}, {NLN2:#x}
s_mov_b32 s{sLN2 + 1}, s{sLN2}
s_mov_b32 s{sNL}, {NLOG2E:#x}
""")
for r in range(8):
    a(f"v_cmp_eq_u32 vcc, {r}, v{t1}")
    a(f"v_pk_mov_b32 {v(ACC0 + 4 * r, 2)}, 0, 0")
    a(f"v_pk_mov_b32 {v(ACC0 + 4 * r + 2, 2)}, 0, 0")
    a(f"v_cndmask_b32 v{PERM + r}, 0, v{t0}, vcc")
a(f"""
v_xor_b32 v{t0}, v{e_}, v{hf_}
v_cmp_eq_u32 vcc, 0, v{t0}
v_cmp_eq_u32 {s(sT, 2)}, 2, v{t0}
v_cmp_eq_u32 {s(sT + 2, 2)}, 4, v{t0}
v_mul_u32_u24 v{t1}, 96, v{hf_}
v_cndmask_b32 v{M1}, 0, v{t3}, vcc
v_cndmask_b32 v{M1}, v{M1}, 1.0, {s(sT, 2)}
v_cndmask_b32 v{M1 + 1}, 0, 1.0, {s(sT + 2, 2)}
s_mul_i32 s{sT}, s{sW}, 192
s_add_u32 s{sT}, s{sT}, {L_LUT}
v_lshl_add_u32 v{M1 + 4}, v{e_}, 4, v{t1}
v_add_u32 v{M1 + 4}, s{sT}, v{M1 + 4}
s_mul_i32 s{sT}, s{sG}, 192
s_add_u32 s{sT}, s{sT}, {L_LUT}
v_add_u32 v{vLUTb}, s{sT}, v{t1}
v_cmp_gt_u32 vcc, 6, v{e_}
s_mov_b32 s{sT + 6}, 0xe3fff
s_cmp_lg_u32 s{sMODE}, 0
s_cbranch_scc1 K2_NOSCAT
s_waitcnt vmcnt({N_AFTER_REC})
""")
stamp(4, vST)


def scatter(recs, sets, ks, masks):
    n = len(recs)
    for i in range(n):
        a(f"v_lshrrev_b32 v{RA + i}, 13, v{recs[i]}")
        a(f"v_and_or_b32 v{RA + i}, v{RA + i}, 14, v{vDS}")
    for i in range(n):
        a(f"ds_read_u16 v{RA + i}, v{RA + i} offset:{256 * sets[i]}")
    for i in range(n):
        a(f"v_lshrrev_b32 v{PAIR + 2 * i + 1}, 20, v{recs[i]}")
        a(f"v_add_u32 v{PAIR + 2 * i + 1}, v{vCB + sets[i]}, v{PAIR + 2 * i + 1}")
        a(f"v_and_b32 v{PAIR + 2 * i}, s{sT + 6}, v{recs[i]}")
    a("s_waitcnt lgkmcnt(0)")
    for i in range(n):
        a(f"v_add_lshl_u32 v{RA + i}, v{RA + i}, v{vJA + sets[i]}, 1")
    for i in range(n):
        a(f"s_mov_b64 exec, {masks[i]}")
        a(f"ds_write_b64 v{RA + i}, {v(PAIR + 2 * i, 2)} offset:{L_LS - 256 + 8 * ks[i]}")
    a("s_mov_b64 exec, -1")


scatter([REC1 + i for i in range(8)], [i >> 2 for i in range(8)], [i & 3 for i in range(8)], [s(sM + 2 * i, 2) for i in range(8)])
for i in range(2):
    a(f"""
    s_cmp_eq_u64 {s(sR2 + 2 * i, 2)}, 0
    s_cbranch_scc1 K2_R2S{i}
    v_subrev_u32 v{t0}, 64, v{vRM + i}
    """)
    for k in range(4):
        a(f"v_cmp_lt_i32 {s(sM + 2 * k, 2)}, {4 * k}, v{t0}")
    scatter([REC2 + 4 * i + k for k in range(4)], [i] * 4, [16 + k for k in range(4)], [s(sM + 2 * k, 2) for k in range(4)])
    a.label(f"K2_R2S{i}")
a.label("K2_NOSCAT")
a(f"""
s_waitcnt vmcnt(1)
v_lshlrev_b32 v{M1 + 2}, 16, v{M1 + 2}
v_lshlrev_b32 v{M1 + 3}, 16, v{M1 + 3}
v_fma_f32 v{M1 + 2}, v{M1 + 2}, v{vKf}, -v{vCf}
s_mov_b64 exec, vcc
ds_write_b128 v{M1 + 4}, {v(M1, 4)}
s_mov_b64 exec, -1
v_lshl_or_b32 v{OB}, v{M0 + 1}, 16, v{M0}
v_lshl_or_b32 v{OB + 1}, v{W3}, 16, v{M0 + 2}
v_lshl_or_b32 v{OB + 2}, v{M0 + 4}, 16, v{M0 + 3}
v_lshl_or_b32 v{OB + 3}, v{W3 + 1}, 16, v{M0 + 5}
s_cmp_lg_u32 s{sMODE}, 0
s_cbranch_scc1 K2_SLOW_INIT
""")
a.label("K2_PROCESS")
a(f"""
s_mul_i32 s{sT + 1}, s{sG}, {LSTR}
v_add_u32 v{pS4}, s{sT + 1}, v{cS4}
v_add_u32 v{pE}, s{sT + 1}, v{cE}
v_add_u32 v{pS1}, s{sT + 1}, v{cS1}
v_add_u32 v{vEArd}, s{sEAd}, v{cEA}
v_mov_b32 v{t1}, v{vEi + 1}
s_mul_i32 s{sT + 2}, s{sW}, {32 * SPR}
s_add_u32 s{sT + 2}, s{sT + 2}, {L_SP}
v_mad_u32_u24 v{t2}, v{vL}, 28, s{sT + 2}
s_waitcnt lgkmcnt(0)
s_barrier
""")
stamp(5, vST)
idx_rd = lambda off: [f"ds_read_u16 v{vI + 2 * i}, v{pS4} offset:{L_LS + off + 64 * i}" for i in range(4)]
a(f"ds_read_b32 v{vEi}, v{pE} offset:{L_LS}")
for x in idx_rd(0):
    a(x)
a(f"""
ds_read_b32 v{vRec}, v{pS1} offset:{L_LS}
ds_read_b32 v{t0}, v{pE} offset:{L_LS + 256}
ds_write2_b32 v{t2}, v{vZ}, v{vZ} offset0:0 offset1:1
ds_write2_b32 v{t2}, v{vZ}, v{vZ} offset0:2 offset1:3
ds_write2_b32 v{t2}, v{vZ}, v{vZ} offset0:4 offset1:5
ds_write_b32 v{t2}, v{vZ} offset:24
s_setprio 2
""")

EAPOL = OPT.get("eapol", "")
BPPOL = OPT.get("bppol", "")


def dma_bp(i):
    return [f"s_mov_b32 m0, s{sBF + i}", "s_nop 0", f"buffer_load_dwordx4 {v(vI + 2 * i, 2)}, {s(rBP, 4)}, 0 idxen offen lds {BPPOL}".rstrip()]


def dma_ea(reg):
    return [f"s_mov_b32 m0, s{sEAd}", f"s_xor_b32 s{sEAd}, s{sEAd}, 1024", f"buffer_load_dwordx4 {v(reg, 2)}, {s(rEA, 4)}, 0 idxen offen lds {EAPOL}".rstrip()]


prep_addr = [f"v_mad_u32_u16 v{vPa}, v{vRec}, 6, v{vPc}", f"v_mad_u32_u16 v{vLa}, v{vRec}, 8, v{vLUTb} op_sel:[1,0,0,0]"]
prep_rd = [f"ds_read_u16_d16_hi v{vAs}, v{vPa} offset:{L_POS - 2}", f"ds_read_u16_d16_hi v{vBs}, v{vPa} offset:{L_POS}", f"ds_read_b128 {v(OH, 4)}, v{vLa}"]
prep_sa = f"v_mad_u32_u16 v{vSaddr}, v{vRec}, 4, v{vSb} op_sel:[1,0,0,0]"
prep_v = [f"v_fma_f32 v{OH + 2}, -v{vAs}, v{vKf}, v{OH + 2}", f"v_sub_f32 v{OH + 3}, v{OH + 3}, v{vBs}",
          f"v_cvt_pk_bf16_f32 v{vQ}, v{OH + 2}, v{OH + 3}",
          f"v_fma_f32 v{OH + 2}, v{OH + 2}, v{OH + 2}, v{vCf}", f"v_fmac_f32 v{OH + 2}, v{OH + 3}, v{OH + 3}", f"v_mul_f32 v{OH + 2}, s{sNL}, v{OH + 2}",
          f"v_cvt_pk_bf16_f32 v{OH + 1}, v{OH + 1}, v{OH + 2}"]
s_wr = f"ds_write_b32 v{vSaddr}, v{vQ}"
s_clr = f"ds_write_b32 v{vSaddr}, v{vZ}"
rd_frag = [f"ds_read_b128 {v(EA, 4)}, v{vEArd}", f"ds_read_b128 {v(BF0, 4)}, v{vBF}", f"ds_read_b128 {v(BF0 + 4, 4)}, v{vBF + 1}",
           f"ds_read_b128 {v(BF1, 4)}, v{vBF + 2}", f"ds_read_b128 {v(BF1 + 4, 4)}, v{vBF + 3}"]
rd_tr = [f"ds_read_b64_tr_b16 {v(SP + 2 * q, 2)}, v{vTR} offset:{q * 8 * SPR}" for q in range(4)]


def mf(d, x, y, c=None, n=4):
    op = "v_mfma_f32_32x32x16_bf16" if n == 4 else "v_mfma_f32_32x32x8_bf16"
    return f"{op} {v(d, 16)}, {v(x, n)}, {v(y, n)}, {'0' if c == 0 else v(d, 16)}"


def emit(L):
    for x in L:
        a(x)


a("s_waitcnt lgkmcnt(6)")
emit(dma_ea(vEi))
for i in range(4):
    emit(dma_bp(i))
a("s_setprio 0")
a("s_waitcnt lgkmcnt(4)")
emit(prep_addr + [prep_sa])
emit(prep_rd)
emit(idx_rd(256))
a(f"""
ds_read_b32 v{vEi}, v{pE} offset:{L_LS + 512}
s_sub_u32 s{sNT}, s{sNT}, {2 * BIAS - 248}
s_bfe_u32 s{sQ}, s{sNT}, 0x20006
s_lshr_b32 s{sNT}, s{sNT}, 8
s_mov_b32 s{sI2 + 1}, -1024
""")
for r in range(4):
    a(f"v_pk_mov_b32 {v(SP + 2 * r, 2)}, 0, 0")
    a(f"v_pk_mov_b32 {v(M1 + 2 * r, 2)}, 0, 0")
a(f"v_pk_mov_b32 {v(M0 + 6, 2)}, 0, 0")
for r in range(2):
    a(f"v_pk_mov_b32 {v(T + 2 * r, 2)}, 0, 0")
emit(dma_ea(t0))
stamp(6, vST)
a("s_waitcnt vmcnt(1) lgkmcnt(5)")
stamp(7, vST)
emit(rd_frag)
emit(prep_v + [s_wr])
a(f"""
v_add_u32 v{vEArd}, 0x400, v{vEArd}
s_waitcnt lgkmcnt(5)
""")
a(mf(P0, EA, W4H, 0))
if USE_LO:
    a(mf(P0, EA, W4L))
a("s_waitcnt lgkmcnt(1)")
a(mf(P0, BF0, PERM))
a(mf(P0, BF0 + 4, PERM + 4))
for i in range(4):
    emit(dma_bp(i))
a(mf(P0, OH, OB, n=2))
emit(dma_ea(vEi))
if opt("bench", 0):
    a(f"s_mov_b32 s{sNT}, {opt('bench', 0)}")
LATE_AT = opt("late", 3)
stamp(8, vST, 13)
if STAMPS:
    a(f"v_writelane_b32 v{vST}, s{sNT}, 15")
if opt("prio", 1):
    a("s_setprio 1")
a(f"""
s_cmp_ge_u32 s{sNT}, {LATE_AT}
s_cbranch_scc1 K2_LOOP
s_call_b64 {s(sRET, 2)}, K2_LATE
s_cmp_eq_u32 s{sNT}, 0
s_cbranch_scc1 K2_DRAINED
s_cmp_eq_u32 s{sNT}, 1
s_cbranch_scc1 K2_TAIL
""")


def silu_slots(P, M, Mprev):
    sl = []
    for k in range(4):
        mdst = (Mprev + 6) if k == 0 else (M + 2 * (k - 1))
        pre = [f"v_cvt_pk_bf16_f32 v{mdst}, v{T}, v{T + 1}", f"v_cvt_pk_bf16_f32 v{mdst + 1}, v{T + 2}, v{T + 3}"]
        tr = [f"v_exp_f32 v{T + i}, v{P + 4 * k + i}" for i in range(4)]
        pk = [f"v_pk_add_f32 {v(T + 2 * i, 2)}, {v(T + 2 * i, 2)}, 1.0 op_sel_hi:[1,0]" for i in range(2)]
        sl.append(pre + tr + pk)
        tr = [f"v_rcp_f32 v{T + i}, v{T + i}" for i in range(4)]
        pk = [f"v_pk_mul_f32 {v(T + 2 * i, 2)}, {v(T + 2 * i, 2)}, {v(P + 4 * k + 2 * i, 2)}" for i in range(2)]
        sl.append(tr + pk)
    return sl


def emit_slot(before, mfma, after, slot):
    flt = lambda L: [x for x in L if not (opt("nodma", 0) and x.startswith("buffer_")) and not (opt("nods", 0) and x.startswith("ds_"))
                     and not (opt("novx", 0) and x.startswith("v_")) and not any(x.startswith(y) for y in OPT.get("drop", "@").split(","))]
    emit(flt(before))
    if mfma:
        a(mfma)
    emit(flt(after))
    emit(slot)


a.raw(".p2align 3")
a.label("K2_LOOP")
A_ = silu_slots(P0, M0, M1)
B_ = silu_slots(P1, M1, M0)
lo = lambda x: x if USE_LO else None
G1 = [f"ds_read_b32 v{vRec}, v{pS1} offset:{L_LS + 256}"] + idx_rd(512) + [f"ds_read_b32 v{vEi}, v{pE} offset:{L_LS + 768}"]
emit_slot([], mf(P1, BF1, PERM, 0), G1, A_[0])
emit_slot([], mf(P1, BF1 + 4, PERM + 4), [f"v_lshl_add_u64 {v(pS1, 2)}, {v(pS1, 2)}, 0, {s(sI1, 2)}"], A_[1])
emit_slot([], mf(P1, EA, W4H + 4), [], A_[2])
emit_slot([], lo(mf(P1, EA, W4L + 4)), ["s_waitcnt lgkmcnt(0)"] + prep_addr, A_[3])
emit_slot([], mf(ACC1, M1, SP), [], A_[4])
emit_slot([], mf(P1, OH, OB + 2, n=2), [], A_[5])
emit_slot([], mf(ACC1, M1 + 4, SP + 4), ["s_waitcnt vmcnt(1)"] + rd_frag[:1] + prep_rd + rd_frag[1:] + rd_tr + [s_clr], A_[6])
emit_slot([], None, [prep_sa, f"v_lshl_add_u64 {v(pE, 2)}, {v(pE, 2)}, 0, {s(sI2, 2)}"], A_[7])
emit_slot([], None, [f"s_xor_b32 s{sI2 + 1}, s{sI2 + 1}, 0xfffff800", f"s_cmp_eq_u32 s{sNT}, {LATE_AT}", "s_cbranch_scc1 K2_LATE_IN", "K2_LATE_BACK:"], B_[0])
emit_slot(["s_waitcnt lgkmcnt(9)"], mf(P0, EA, W4H, 0), prep_v[:3], B_[1])
emit_slot([], lo(mf(P0, EA, W4L)), ["s_waitcnt lgkmcnt(5)", s_wr] + dma_bp(0) + dma_bp(1) + dma_bp(2) + dma_bp(3) + dma_ea(vEi), B_[2])
emit_slot([], mf(P0, BF0, PERM), prep_v[3:], B_[3])
emit_slot([], mf(P0, BF0 + 4, PERM + 4), [], B_[4])
emit_slot(["s_waitcnt lgkmcnt(2)"], mf(ACC0, M0, SP), [], B_[5])
emit_slot([], mf(P0, OH, OB, n=2), [], B_[6])
emit_slot([f"s_sub_u32 s{sNT}, s{sNT}, 1", f"s_cmp_lg_u32 s{sNT}, 1"], mf(ACC0, M0 + 4, SP + 4), [], B_[7])
a("s_cbranch_scc1 K2_LOOP")

a.label("K2_TAIL")


def tail_quad(tag, P, M, k, m1, m2):
    ex = [f"v_exp_f32 v{T + i}, v{P + 4 * k + i}" for i in range(4)] + [f"v_pk_add_f32 {v(T + 2 * i, 2)}, {v(T + 2 * i, 2)}, 1.0 op_sel_hi:[1,0]" for i in range(2)]
    rc = [f"v_rcp_f32 v{T + i}, v{T + i}" for i in range(4)] + [f"v_pk_mul_f32 {v(T + 2 * i, 2)}, {v(T + 2 * i, 2)}, {v(P + 4 * k + 2 * i, 2)}" for i in range(2)]
    rc += [f"v_cvt_pk_bf16_f32 v{M + 2 * k}, v{T}, v{T + 1}", f"v_cvt_pk_bf16_f32 v{M + 2 * k + 1}, v{T + 2}, v{T + 3}"]
    if k:
        a(f"s_cmp_lt_u32 s{sQ}, {k}")
    emit(m1)
    if k and m2:
        a(f"s_cbranch_scc1 {tag}{k}a")
    elif k:
        a(f"s_cbranch_scc1 {tag}{k}b")
    emit(ex)
    if k and m2:
        a.label(f"{tag}{k}a")
    emit(m2)
    if k and m2:
        a(f"s_cbranch_scc1 {tag}{k}b")
    emit(rc)
    if k:
        a.label(f"{tag}{k}b")


a(mf(P1, OH, OB + 2, 0, n=2))
a(f"""
v_cvt_pk_bf16_f32 v{M1 + 6}, v{T}, v{T + 1}
v_cvt_pk_bf16_f32 v{M1 + 7}, v{T + 2}, v{T + 3}
""")
tail_quad("K2_TA", P0, M0, 0, ["s_nop 1"], [mf(ACC1, M1, SP)])
tail_quad("K2_TA", P0, M0, 1, [mf(ACC1, M1 + 4, SP + 4)] + rd_tr, [mf(P1, BF1, PERM)])
tail_quad("K2_TA", P0, M0, 2, [mf(P1, BF1 + 4, PERM + 4)], [mf(P1, EA, W4H + 4)] + ([mf(P1, EA, W4L + 4)] if USE_LO else []))
tail_quad("K2_TA", P0, M0, 3, [], [])
a("s_waitcnt lgkmcnt(0)")
a(mf(ACC0, M0, SP))
a("s_nop 6")
tail_quad("K2_TB", P1, M1, 0, [], [mf(ACC0, M0 + 4, SP + 4)])
tail_quad("K2_TB", P1, M1, 1, [], [])
tail_quad("K2_TB", P1, M1, 2, ["s_nop 0", mf(ACC1, M1, SP)], [])
tail_quad("K2_TB", P1, M1, 3, [], [])
a("s_nop 1")
a(mf(ACC1, M1 + 4, SP + 4))
a.label("K2_DRAINED")
stamp(9, vST, 14)
a(f"""
s_cmp_lg_u32 s{sMODE}, 0
s_cbranch_scc1 K2_SLOW_NEXT
""")
a.label("K2_EPI")
AF = M0
PD = BF0
for fb, ACC in enumerate((ACC0, ACC1)):
    for i in range(8):
        a(f"v_pk_mul_f32 {v(ACC + 2 * i, 2)}, {v(ACC + 2 * i, 2)}, {s(sLN2, 2)}")
    for i in range(8):
        a(f"v_cvt_pk_bf16_f32 v{AF + 8 * fb + i}, v{ACC + 2 * i}, v{ACC + 2 * i + 1}")
a("s_waitcnt vmcnt(0)")
a("s_nop 0")
for st in range(4):
    a(mf(P0, AF + 4 * st, WH2 + 8 * st, 0 if st == 0 else None))
for st in range(4):
    a(mf(P1, AF + 4 * st, WH2 + 8 * st + 4, 0 if st == 0 else None))
for st in range(4):
    a(mf(PD, WX + 4 * st, AF + 4 * st, 0 if st == 0 else None))
for j in range(3):
    a(f"v_and_b32 v{DD + 3 + j}, 0xffff0000, v{DD + j}")
    a(f"v_lshlrev_b32 v{DD + j}, 16, v{DD + j}")
for i in range(6):
    a(f"v_lshlrev_b32 v{HR + i}, 16, v{HR + i}")
a(f"v_lshlrev_b32 v{PR}, 16, v{PR}")
E_ = ACC0
for fb, P in enumerate((P0, P1)):
    for j in range(3):
        a(f"v_add_f32 v{DD + 3 * fb + j}, v{DD + 3 * fb + j}, v{P + 4 * j}")
for i in range(6):
    a(f"v_mul_f32 v{E_ + i}, s{sNL}, v{DD + i}")
for i in range(6):
    a(f"v_exp_f32 v{E_ + i}, v{E_ + i}")
for i in range(6):
    a(f"v_add_f32 v{E_ + i}, 1.0, v{E_ + i}")
for i in range(6):
    a(f"v_rcp_f32 v{E_ + i}, v{E_ + i}")
for i in range(6):
    a(f"v_fmac_f32 v{HR + i}, v{DD + i}, v{E_ + i}")
for i in range(3):
    a(f"v_cvt_pk_bf16_f32 v{HR + i}, v{HR + i}, v{HR + 3 + i}")
a(f"""
v_add_f32 v{PR}, v{PR}, v{PD}
s_mov_b32 s{sT}, 1280000
v_cvt_pk_bf16_f32 v{PR}, v{PR}, v{PR}
""")
for j in range(2):
    a(f"buffer_store_short v{HR + j}, v{vOo}, {s(rOUT, 4)}, 0 offen offset:{256 * j}")
    a(f"buffer_store_short_d16_hi v{HR + j}, v{vOo}, {s(rOUT, 4)}, 0 offen offset:{256 * j + 64}")
a(f"""
s_cmp_eq_u32 s{sSZ}, 5
s_mov_b32 exec_hi, 0
s_cbranch_scc0 K2_FOUR
buffer_store_short v{HR + 2}, v{vOo}, {s(rOUT, 4)}, 0 offen offset:512
buffer_store_short_d16_hi v{HR + 2}, v{vOo}, {s(rOUT, 4)}, 0 offen offset:576
""")
a.label("K2_FOUR")
a(f"""
s_movk_i32 s{sT + 1}, 0x7777
s_cselect_b32 s{sT + 1}, 0x77777, s{sT + 1}
s_lshl_b32 exec_lo, s{sT + 1}, 1
buffer_store_short v{PR}, v{vPo}, {s(rOUT, 4)}, s{sT} offen
""")
stamp(10, vST)
if STAMPS:
    a("s_waitcnt vmcnt(0)")
stamp(11, vST)
stamp_out(vST, sWS, sW, 1 << 19)
a.label("K2_END")
a("s_endpgm")

a.label("K2_LATE_IN")
a(f"s_call_b64 {s(sRET, 2)}, K2_LATE")
if opt("prio", 1):
    a("s_setprio 0")
a("s_branch K2_LATE_BACK")
a.label("K2_LATE")
a(f"""
v_lshlrev_b32 v{DD + 3}, 4, v{vL}
v_add_u32 v{DD + 3}, {FR_OFF + FR_WH2}, v{DD + 3}
v_add_u32 v{DD + 4}, 0x1000, v{DD + 3}
v_lshlrev_b32 v{DD + 5}, 2, v{vPc}
v_add_u32 v{DD + 5}, {FR_OFF + FR_WX}, v{DD + 5}
v_lshrrev_b32 v{PR}, 2, v{cS1}
s_mov_b32 s{sT}, {DP_OFF}
v_add3_u32 v{PR}, v{PR}, v{vOo}, s{sT}
""")
for i in range(8):
    a(f"global_load_dwordx4 {v(WH2 + 4 * i, 4)}, v{DD + 3 + (i >> 2)}, {s(sWS, 2)} offset:{(i & 3) * 1024}")
for i in range(4):
    a(f"global_load_dwordx4 {v(WX + 4 * i, 4)}, v{DD + 5}, {s(sWS, 2)} offset:{i * 32}")
for j in range(3):
    a(f"global_load_dword v{DD + j}, v{PR}, {s(sWS, 2)} offset:{256 * j}")
    for fb in range(2):
        a(f"buffer_load_ushort v{HR + 3 * fb + j}, v{vOo}, {s(rH, 4)}, 0 offen offset:{64 * fb + 256 * j}")
a(f"buffer_load_ushort v{PR}, v{vPo}, {s(rPOS, 4)}, 0 offen")
a(f"s_setpc_b64 {s(sRET, 2)}")

a.label("K2_SLOW_INIT")
a(f"""
s_mov_b32 s{sC}, 0
s_branch K2_SLOW_CHUNK
""")
a.label("K2_SLOW_NEXT")
a(f"""
s_waitcnt vmcnt(0) lgkmcnt(0)
s_add_u32 s{sJ}, s{sJ}, {4 * CAP}
s_cmp_lt_u32 s{sJ}, s{sEND}
s_cbranch_scc1 K2_SLOW_ROUND
s_add_u32 s{sC}, s{sC}, 1
s_cmp_ge_u32 s{sC}, 256
s_cbranch_scc1 K2_EPI
K2_SLOW_CHUNK:
s_mul_i32 s{sT}, s{sC}, {OSTR}
s_lshl_b32 s{sT + 1}, s{sBIN}, 4
s_add_u32 s{sT}, s{sT}, s{sT + 1}
s_add_u32 s{sT}, s{sT}, {OFF_OFF}
s_add_u32 s{sT + 1}, s{sT}, 16
s_load_dword s{sT + 2}, {s(sWS, 2)}, s{sT}
s_load_dword s{sT + 3}, {s(sWS, 2)}, s{sT + 1}
s_waitcnt lgkmcnt(0)
s_and_b32 s{sJ}, s{sT + 2}, 0xffff
s_and_b32 s{sEND}, s{sT + 3}, 0xffff
""")
a.label("K2_SLOW_ROUND")
a("s_barrier")
init_lists(P1)
a(f"""
s_mul_i32 s{sT + 2}, s{sC}, 2500
s_mul_i32 s{sT + 3}, s{sC}, {RSTR}
v_lshl_add_u32 v{t0}, v0, 2, s{sJ}
s_add_u32 s{sT + 4}, s{sJ}, {4 * CAP}
s_min_u32 s{sT + 4}, s{sT + 4}, s{sEND}
v_cmp_gt_u32 vcc, s{sT + 4}, v{t0}
v_add_u32 v{t0}, s{sT + 3}, v{t0}
global_load_dword v{REC1}, v{t0}, {s(sWS, 2)}
s_lshl_b32 s{sT}, s{sW}, 11
s_add_u32 s{sEAd}, s{sT}, {L_EA}
s_waitcnt vmcnt(0) lgkmcnt(0)
s_barrier
v_lshrrev_b32 v{t0}, 13, v{REC1}
v_and_b32 v{t0}, 12, v{t0}
v_bfe_u32 v{t1}, v{REC1}, 14, 1
v_lshlrev_b32 v{t1}, 4, v{t1}
v_lshlrev_b32 v{t2}, v{t1}, 4
v_lshrrev_b32 v{RA + 1}, 20, v{REC1}
v_add_u32 v{RA + 1}, s{sT + 2}, v{RA + 1}
v_and_b32 v{RA}, s{sT + 6}, v{REC1}
s_mov_b64 exec, vcc
ds_add_rtn_u32 v{t0}, v{t0}, v{t2} offset:{L_CNT}
s_waitcnt lgkmcnt(0)
v_bfe_u32 v{t0}, v{t0}, v{t1}, 16
v_subrev_u32 v{t0}, {RSTR}, v{t0}
v_lshlrev_b32 v{t0}, 1, v{t0}
ds_write_b64 v{t0}, {v(RA, 2)} offset:{L_LS - 256}
s_mov_b64 exec, -1
v_lshrrev_b32 v{t1}, 2, v{cS4}
s_waitcnt lgkmcnt(0)
s_barrier
ds_read_u16 v{t1}, v{t1} offset:{L_CNT}
s_lshl_b32 s{sT}, s{sW}, 3
s_waitcnt lgkmcnt(0)
v_lshl_add_u32 v{t1}, v{t1}, 1, v{cKa}
s_nop 0
v_readlane_b32 s{sNT}, v{t1}, s{sT}
s_branch K2_PROCESS
""")

a.raw('.section .rodata,"a"')
for name, nv in (("egnn_bin_kernel", 96), ("egnn_edge_kernel", NVGPR)):
    a.raw(".p2align 6")
    a.raw(f".amdhsa_kernel {name}")
    a.raw(f"  .amdhsa_next_free_vgpr {nv}")
    a.raw("  .amdhsa_next_free_sgpr 102")
    a.raw(f"  .amdhsa_accum_offset {nv}")
    a.raw("  .amdhsa_group_segment_fixed_size 0")
    a.raw("  .amdhsa_kernarg_size 88")
    a.raw("  .amdhsa_user_sgpr_count 2")
    a.raw("  .amdhsa_user_sgpr_kernarg_segment_ptr 1")
    a.raw("  .amdhsa_system_sgpr_workgroup_id_x 1")
    a.raw("  .amdhsa_float_denorm_mode_32 3")
    a.raw(".end_amdhsa_kernel")

probs = check_hazards([l for l in a.lines if not l.startswith(";") and not l.startswith(" ")])
for p in probs:
    print(p, file=sys.stderr)
open(sys.argv[1], "w").write(a.text())
print(f"wrote {sys.argv[1]}: {len(a.lines)} lines, {len(probs)} hazards, K2 LDS {K2_LDS}", file=sys.stderr)
```

```python
import sys
from asmlib import Asm, v, s, check_hazards

OPT = dict(a.split("=") for a in sys.argv[2:] if "=" in a)


def opt(k, d):
    return int(OPT.get(k, d))


NLOG2E = 0xBFB8AA3B
NLN2 = 0xBF317218
USE_LO = opt("lo", 0)
RSTR = 10240
OFF_OFF = 2752512
OSTR = 4224
AP_OFF = 4194304
TSTRIDE = 1572864
BP_OFF = AP_OFF + TSTRIDE
DP_OFF = AP_OFF + 2 * TSTRIDE
FR_OFF = 8912896
FR_W4H, FR_W4L, FR_WH2, FR_WX, FR_W3 = 0, 2048, 4096, 12288, 12800
NG = 157

a = Asm()
HEADER = open("standalone__cheap_equivariant_egnn__graph.s.ref").read().split("; Override")[0]
K1_LDS = 32768
L_CNT = 0
L_FLAG = 32
L_LS = 256
LSTR = 4112
L_POS = L_LS + 8 * LSTR + 272
L_EA = (L_POS + 60416 + 2047) // 2048 * 2048
L_BF = (L_EA + 16384 + 127) // 128 * 128
L_SP = L_BF + 32768
SPR = 56
L_LUT = L_SP + 8 * 32 * SPR
K2_LDS = L_LUT + 8 * 192
XC, YC = 96, 384
BIAS = 10240 + 128
assert L_POS % 16 == 0 and L_POS < 65536
a.raw(HEADER.rstrip())
a.raw(f"; @launch kernel=egnn_bin_kernel grid=({256 + NG + 1},1,1) block=(512,1,1) lds={K1_LDS}")
a.raw(f"; @launch kernel=egnn_edge_kernel grid=(256,1,1) block=(512,1,1) lds={K2_LDS}")
a.raw('.amdgcn_target "amdgcn-amd-amdhsa--gfx950"')
a.raw(".text")


def kernel_head(name):
    a.raw(f".globl {name}")
    a.raw(".p2align 8")
    a.raw(f".type {name},@function")
    a.label(name)


def srd(d, base, nrec, off=0, stride=0):
    if off:
        a(f"s_add_u32 {s(d)}, {s(base)}, {off}")
        a(f"s_addc_u32 {s(d + 1)}, {s(base + 1)}, {stride << 16}")
    else:
        a(f"s_mov_b32 {s(d)}, {s(base)}")
        if stride:
            a(f"s_or_b32 {s(d + 1)}, {s(base + 1)}, {stride << 16}")
        else:
            a(f"s_mov_b32 {s(d + 1)}, {s(base + 1)}")
    a(f"s_mov_b32 {s(d + 2)}, {nrec}")
    a(f"s_mov_b32 {s(d + 3)}, 0x20000")


STAMPS = opt("stamps", 0)
ST_OFF = 10 << 20


def stamp(i, vr, cyc=None):
    if STAMPS:
        a("s_memrealtime s[100:101]")
        a("s_waitcnt lgkmcnt(0)")
        a(f"v_writelane_b32 v{vr}, s100, {i}")
        if cyc is not None:
            a("s_memtime s[100:101]")
            a("s_waitcnt lgkmcnt(0)")
            a(f"v_writelane_b32 v{vr}, s100, {cyc}")


def stamp_out(vr, ws, wave, base):
    if STAMPS:
        a("s_mov_b64 exec, 0xffff")
        a("s_lshl_b32 s100, s2, 4")
        a(f"s_add_u32 s100, s100, s{wave}")
        a("s_lshl_b32 s100, s100, 6")
        a(f"s_add_u32 s100, s100, {ST_OFF + base}")
        a(f"v_mbcnt_lo_u32_b32 v{vr - 1}, -1, 0")
        a(f"v_lshl_add_u32 v{vr - 1}, v{vr - 1}, 2, s100")
        a(f"global_store_dword v{vr - 1}, v{vr}, s[{ws}:{ws + 1}]")


K1POL = OPT.get("k1pol", "")
SV1 = 95
GPOL = OPT.get("gpol", "")
kernel_head("egnn_bin_kernel")
stamp(0, SV1)
a(f"""
s_load_dwordx16 s[4:19], s[0:1], 0
s_load_dwordx2 s[20:21], s[0:1], 80
v_lshrrev_b32 v1, 6, v0
s_cmp_ge_u32 s2, 256
v_readfirstlane_b32 s3, v1
s_cbranch_scc1 K1_OTHER
""")
STG = 8704
a(f"""
s_mul_i32 s22, s2, 10000
v_lshlrev_b32 v1, 4, v0
v_add_u32 v2, s22, v1
v_lshlrev_b32 v3, 2, v0
v_pk_mov_b32 v[24:25], 0, 0
v_pk_mov_b32 v[26:27], 0, 0
s_add_u32 s23, s22, 8192
v_min_u32 v21, 451, v0
v_lshl_add_u32 v21, v21, 2, s23
ds_write_b128 v1, v[24:27]
ds_write_b32 v3, v24 offset:8192
s_waitcnt lgkmcnt(0)
global_load_dwordx4 v[4:7], v2, s[12:13]
global_load_dword v8, v21, s[12:13]
global_load_dwordx4 v[10:13], v2, s[10:11]
global_load_dword v14, v21, s[10:11]
s_barrier
v_cmp_gt_u32 vcc, 452, v0
v_mov_b32 v21, 4
v_lshlrev_b32 v22, 22, v0
v_add_u32 v9, 0x800, v0
v_lshlrev_b32 v9, 20, v9
v_and_b32 v23, 63, v0
s_mov_b64 s[26:27], vcc
s_mov_b32 s24, 429497
s_mov_b32 s25, 0x1fffff
s_mov_b32 s28, 0x100000
s_mov_b32 s29, 0x200000
s_mov_b32 s30, 0x300000
s_movk_i32 s31, 0x1ffc
s_mul_i32 s22, s2, {RSTR}
v_add_u32 v2, s22, v1
s_lshl_b32 s32, 0xfe, s3
s_and_b32 s32, s32, 0xff
s_mov_b32 s33, 0
s_mul_i32 s22, s2, {OSTR}
s_add_u32 s22, s22, {OFF_OFF}
v_lshl_add_u32 v3, v0, 3, s22
v_lshlrev_b32 v23, 2, v23
s_lshl_b32 s22, s3, 2
v_mov_b32 v20, s22
s_and_b32 s34, s2, 7
s_lshl_b32 s34, s34, 2
s_mul_i32 s22, s2, 80000
v_lshl_add_u32 v49, v0, 7, s22
s_add_u32 s22, s22, 65536
v_lshl_add_u32 v51, v0, 5, s22
""")
stamp(1, SV1)
a("s_waitcnt vmcnt(2)")
stamp(2, SV1)
for k in range(5):
    a(f"v_mul_u32_u24 v{4 + k}, s24, v{4 + k}")
    a(f"v_lshrrev_b32 v{15 + k}, 19, v{4 + k}")
    a(f"v_and_b32 v{15 + k}, s31, v{15 + k}")
for k in range(5):
    if k == 4:
        a("s_mov_b64 exec, s[26:27]")
    a(f"ds_add_rtn_u32 v{32 + k}, v{15 + k}, v21")
a("s_mov_b64 exec, -1")
PF = opt("pf", 1)
for k in range(5):
    a(f"v_and_b32_sdwa v{44 + k}, 28, v{15 + k} dst_sel:DWORD src0_sel:DWORD src1_sel:BYTE_1")
if PF:
    for k in range(5):
        a(f"v_cmp_eq_u32 s[{36 + 2 * k}:{37 + 2 * k}], s34, v{44 + k}")
    a("""
    s_or_b64 s[36:37], s[36:37], s[38:39]
    s_or_b64 s[40:41], s[40:41], s[42:43]
    s_or_b64 exec, s[36:37], s[40:41]
    global_load_dword v50, v49, s[8:9]
    s_and_b64 exec, s[44:45], s[26:27]
    global_load_dword v52, v51, s[8:9]
    s_mov_b64 exec, -1
    """)
for k in range(5):
    a(f"""
    v_and_b32 v24, s25, v{4 + k}
    v_mul_u32_u24 v24, 0x4e2, v24
    v_lshrrev_b32 v24, 29, v24
    v_bfe_u32 v{4 + k}, v{4 + k}, 21, 3
    v_lshl_or_b32 v{4 + k}, v24, 3, v{4 + k}
    v_lshl_or_b32 v{4 + k}, v{4 + k}, 14, v{22 if k < 4 else 9}
    """)
stamp(3, SV1)
a("""
s_waitcnt lgkmcnt(0)
s_barrier""")
stamp(4, SV1)
a("ds_read_b128 v[24:27], v1")
a(f"""
s_waitcnt lgkmcnt(0)
v_add_u32 v28, v24, v25
v_add_u32 v29, v28, v26
v_add_u32 v30, v29, v27
v_mov_b32 v31, v30
s_waitcnt vmcnt({2 if PF else 0})
s_nop 0
""")
fill = ["v_or_b32 v4, v4, v10", "v_or3_b32 v5, v5, v11, s28", "v_or3_b32 v6, v6, v12, s29", "v_or3_b32 v7, v7, v13, s30", "v_or_b32 v8, v8, v14", "s_nop 0"]
for n, ctl in enumerate(("row_shr:1 row_mask:0xf", "row_shr:2 row_mask:0xf", "row_shr:4 row_mask:0xf", "row_shr:8 row_mask:0xf",
                         "row_bcast:15 row_mask:0xa", "row_bcast:31 row_mask:0xc")):
    a(f"v_add_u32_dpp v31, v31, v31 {ctl} bank_mask:0xf")
    if n < 5:
        a(fill[n])
        a("s_nop 0")
a("""
v_sub_u32 v40, v31, v30
v_readlane_b32 s22, v31, 63
v_add_u32 v41, v40, v24
v_add_u32 v42, v40, v28
v_add_u32 v43, v40, v29
v_mov_b32 v30, s22
ds_write_b128 v1, v[40:43]
s_mov_b64 exec, s[32:33]
ds_add_u32 v23, v30 offset:8192
s_mov_b64 exec, -1
v_lshl_or_b32 v40, v41, 16, v40
v_lshl_or_b32 v41, v43, 16, v42
s_waitcnt lgkmcnt(0)
s_barrier
ds_read_b32 v20, v20 offset:8192
""")
for k in range(5):
    a(f"ds_read_b32 v{10 + k}, v{15 + k}")
    a(f"ds_read_b32 v{44 + k}, v{44 + k} offset:8192")
a(f"""
s_waitcnt lgkmcnt(10)
v_lshl_or_b32 v20, v20, 16, v20
v_add_u32 v40, v40, v20
v_add_u32 v41, v41, v20
v_mov_b32 v42, 10000
global_store_dwordx2 v3, v[40:41], s[20:21] {K1POL}
s_waitcnt lgkmcnt(0)
""")
for k in range(5):
    a(f"v_add3_u32 v{10 + k}, v{10 + k}, v{32 + k}, v{44 + k}")
for k in range(5):
    if k == 4:
        a("s_mov_b64 exec, s[26:27]")
    a(f"ds_write_b32 v{10 + k}, v{4 + k} offset:{STG}")
a("s_mov_b64 exec, -1")
stamp(5, SV1)
a("""
s_waitcnt lgkmcnt(0)
s_barrier""")
stamp(6, SV1)
a(f"""
ds_read_b128 v[4:7], v1 offset:{STG}
s_cmp_ge_u32 s3, 2
s_cbranch_scc1 K1_ONE
ds_read_b128 v[8:11], v1 offset:{STG + 8192}
v_add_u32 v12, 0x2000, v2
s_waitcnt lgkmcnt(0)
global_store_dwordx4 v12, v[8:11], s[20:21] {K1POL}
""")
a.label("K1_ONE")
a(f"""
s_waitcnt lgkmcnt(0)
global_store_dwordx4 v2, v[4:7], s[20:21] {K1POL}
s_cmp_lg_u32 s3, 7
s_cbranch_scc1 K1_SEND
s_mov_b64 exec, 1
global_store_dword v3, v42, s[20:21] offset:512 {K1POL}
""")
a.label("K1_SEND")
if STAMPS:
    a("s_waitcnt vmcnt(0)")
stamp(7, SV1)
stamp_out(SV1, 20, 3, 0)
a("s_endpgm")

a.label("K1_OTHER")
a(f"""
s_cmp_ge_u32 s2, {256 + NG}
s_cbranch_scc1 K1_FRAG
s_sub_u32 s22, s2, 256
s_lshl_b32 s22, s22, 13
v_and_b32 v1, 63, v0
v_lshlrev_b32 v2, 4, v0
v_add_u32 v3, 0x2000, v2
v_xor_b32 v4, v2, v0
v_and_b32 v4, 0x70, v4
v_lshrrev_b32 v5, 3, v0
v_lshl_or_b32 v4, v5, 7, v4
s_lshl_b32 s23, s3, 10
s_add_u32 m0, s23, 24576
s_waitcnt lgkmcnt(0)
""")
srd(24, 4, 1280000)
a(f"""
buffer_load_dwordx4 v4, s[24:27], s22 offen lds
s_mov_b32 m0, s23
s_lshr_b32 s29, s3, 1
global_load_lds_dwordx4 v2, s[14:15]
s_add_u32 m0, s23, 8192
s_and_b32 s28, s3, 1
global_load_lds_dwordx4 v3, s[14:15]
s_add_u32 m0, s23, 16384
s_lshl_b32 s28, s28, 12
global_load_lds_dwordx4 v2, s[18:19]
s_cmp_eq_u32 s29, 2
s_cselect_b32 s30, 1.0, {NLOG2E:#x}
s_mov_b32 s31, s30
v_lshrrev_b32 v4, 5, v1
v_lshlrev_b32 v5, 3, v4
v_bfe_u32 v6, v1, 2, 2
v_add_u32 v5, v5, v6
v_lshlrev_b32 v5, 7, v5
v_bfe_u32 v6, v1, 4, 1
v_lshl_or_b32 v5, v6, 5, v5
v_and_b32 v6, 3, v1
v_lshl_or_b32 v5, v6, 3, v5
s_lshl_b32 s23, s29, 13
v_add_u32 v5, s23, v5
v_and_b32 v6, 31, v1
v_lshrrev_b32 v7, 1, v6
v_xor_b32 v7, v7, v4
v_and_b32 v7, 7, v7
v_lshlrev_b32 v7, 4, v7
v_lshl_or_b32 v7, v6, 7, v7
v_add_u32 v7, s28, v7
v_xor_b32 v8, 32, v7
v_xor_b32 v9, 64, v7
v_xor_b32 v10, 0x60, v7
v_lshlrev_b32 v11, 2, v6
v_lshl_or_b32 v11, v4, 9, v11
s_add_u32 s22, s22, s28
s_mul_i32 s23, s29, {TSTRIDE}
s_add_u32 s23, s23, {AP_OFF}
s_add_u32 s24, s20, s23
s_addc_u32 s25, s21, 0
s_waitcnt vmcnt(0)
s_barrier
s_cmp_ge_u32 s3, 6
s_cbranch_scc1 K1_END
""")
HB, WA, D0, D1 = 12, 28, 60, 76
for st in range(4):
    a(f"ds_read_b128 {v(HB + 4 * st, 4)}, v{7 + st} offset:24576")
    for u in range(2):
        a(f"ds_read_b64_tr_b16 {v(WA + 4 * st + 2 * u, 2)}, v5 offset:{(16 * st + 4 * u) * 128}")
for st in range(4):
    a(f"s_waitcnt lgkmcnt({9 - st})")
    a(f"v_mfma_f32_32x32x16_bf16 {v(D0, 16)}, {v(HB + 4 * st, 4)}, {v(WA + 4 * st, 4)}, {'0' if st == 0 else v(D0, 16)}")
    for u in range(2):
        a(f"ds_read_b64_tr_b16 {v(WA + 16 + 4 * st + 2 * u, 2)}, v5 offset:{(16 * st + 4 * u) * 128 + 64}")
for st in range(4):
    a(f"s_waitcnt lgkmcnt({6 - 2 * st})")
    a(f"v_mfma_f32_32x32x16_bf16 {v(D1, 16)}, {v(HB + 4 * st, 4)}, {v(WA + 16 + 4 * st, 4)}, {'0' if st == 0 else v(D1, 16)}")
a("s_nop 3")
for i in range(16):
    a(f"v_pk_mul_f32 {v(D0 + 2 * i, 2)}, {v(D0 + 2 * i, 2)}, s[30:31]")
for r in range(16):
    a(f"v_cvt_pk_bf16_f32 v{D0 + r}, v{D0 + r}, v{D1 + r}")
for r in range(16):
    a(f"buffer_store_dword v{D0 + r}, v11, s[24:27], s22 offen offset:{((r & 3) + 8 * (r >> 2)) * 128} {GPOL}")
if STAMPS:
    a("s_waitcnt vmcnt(0)")
stamp(7, SV1)
stamp_out(SV1, 20, 3, 0)
a("s_endpgm")
a.label("K1_FRAG")
a(f"""
s_cmp_lg_u32 s2, {256 + NG}
s_cbranch_scc1 K1_END
v_and_b32 v1, 3, v0
v_bfe_u32 v2, v0, 2, 5
v_bfe_u32 v3, v0, 7, 1
v_bfe_u32 v4, v0, 8, 1
v_lshrrev_b32 v6, 1, v1
v_and_b32 v7, 1, v1
v_lshl_or_b32 v5, v6, 2, v7
v_lshl_or_b32 v6, v3, 1, v5
v_lshl_or_b32 v8, v4, 5, v2
v_lshlrev_b32 v8, 1, v8
v_lshl_or_b32 v6, v6, 7, v8
v_add_u32 v6, 8192, v6
v_add_u32 v7, 4096, v6
v_and_b32 v8, 30, v2
v_lshl_or_b32 v8, v4, 5, v8
v_and_b32 v9, 1, v2
v_lshl_or_b32 v8, v9, 6, v8
v_lshlrev_b32 v9, 1, v1
v_lshl_or_b32 v9, v3, 3, v9
v_lshl_or_b32 v9, v9, 7, v8
v_add_u32 v9, {129 * 128}, v9
v_bfe_u32 v10, v0, 2, 1
v_lshl_or_b32 v5, v10, 1, v5
v_bfe_u32 v10, v0, 3, 2
v_lshl_or_b32 v5, v10, 3, v5
v_lshlrev_b32 v10, 1, v5
v_lshlrev_b32 v12, 2, v0
v_add_u32 v12, {FR_OFF}, v12
s_mov_b32 s22, {NLOG2E:#x}
s_waitcnt lgkmcnt(0)
""")
for i in range(4):
    a(f"global_load_ushort v{16 + 2 * i}, v6, s[18:19] offset:{i * 1024}")
    a(f"global_load_ushort v{17 + 2 * i}, v7, s[18:19] offset:{i * 1024}")
a(f"""
global_load_ushort v24, v9, s[14:15]
global_load_ushort v25, v9, s[14:15] offset:128
global_load_ushort v26, v10, s[16:17]
global_load_ushort v31, v10, s[16:17] offset:64
v_add_u32 v13, {FR_WH2}, v12
v_add_u32 v14, {FR_WH2 + 4096}, v12
v_add_u32 v15, {FR_WX}, v12
s_waitcnt vmcnt(0)
""")
for i in range(4):
    a(f"v_lshl_or_b32 v{16 + 2 * i}, v{17 + 2 * i}, 16, v{16 + 2 * i}")
    a(f"global_store_dword v{13 + (i >> 1)}, v{16 + 2 * i}, s[20:21] offset:{(i & 1) * 2048}")
a(f"""
v_lshlrev_b32 v24, 16, v24
v_lshlrev_b32 v25, 16, v25
v_mul_f32 v27, s22, v24
v_mul_f32 v28, s22, v25
v_cvt_pk_bf16_f32 v29, v27, v28
v_lshl_or_b32 v26, v31, 16, v26
global_store_dword v12, v29, s[20:21] offset:{FR_W4H}
""")
if USE_LO:
    a(f"""
    v_lshlrev_b32 v27, 16, v29
    v_and_b32 v28, 0xffff0000, v29
    v_fma_f32 v27, v24, s22, -v27
    v_fma_f32 v28, v25, s22, -v28
    v_cvt_pk_bf16_f32 v30, v27, v28
    global_store_dword v12, v30, s[20:21] offset:{FR_W4L}
    """)
a(f"""
s_cmp_lg_u32 s3, 0
s_cbranch_scc1 K1_END
global_store_dword v15, v26, s[20:21]
""")
a.label("K1_END")
a("s_endpgm")

sW = 3
sH, sPOS, sEAT, sWE = 4, 6, 8, 14
sOUT, sWS = 20, 22
rBP, rEA, rAP, rPOS, rH, rOUT = 24, 28, 32, 36, 40, 44
sBF = 48
sI1 = 52
sI2 = 54
sLN2 = 56
sRET = 58
sM = 60
sBIN, sN0, sMODE, sNT, sEAd, sG, sNL, sSZ = 76, 77, 78, 79, 80, 81, 82, 83
sC, sJ, sEND, sQ = 84, 85, 86, 87
sR2 = 88
sT = 92

vL = 1
pS1, pS4, pE, vEArd = 2, 3, 4, 5
vBF = 6
vI = 10
vEi = 18
vTR, vLUTb, vSb, vSaddr, vPc, vKf, vCf = 20, 21, 22, 23, 24, 25, 26
vRec, vPa, vLa, vAs, vBs, vZ, vQ = 27, 28, 29, 30, 31, 32, 33
cS1, cS4, cE, cEA = 34, 35, 36, 37
cKa, cKb = 38, 39
OH = 40
T = 44
EA = 48
P0, P1 = 52, 68
ACC0, ACC1 = 84, 100
M0, M1 = 116, 124
BF0, BF1 = 132, 140
SP = 148
PERM = 156
W4H, W4L = 164, 172
WH2 = 180
WX = 212
DD = 228
HR = 234
PR = 240
vOo, vPo, cPo = 241, 242, 243
OB = 244
W3 = 248
vST = 255
NVGPR = 256

e_, hf_, t0, t1, t2, t3 = BF0, BF0 + 1, BF0 + 2, BF0 + 3, BF0 + 4, BF0 + 5
vJ, vL16, vCA, vDT, vDS, vS12 = BF0 + 6, BF0 + 7, BF0 + 8, BF0 + 9, BF0 + 10, BF0 + 11
vCB = BF0 + 12
vRB = BF0 + 14
ENT = SP
vJA = SP + 4
vRM = SP + 6
REC1 = P0
vJX, vRX, vAX = P0 + 12, P0 + 14, EA
RA = P1
PAIR = WH2
cA2, cB2, cMid, cAi, cBi = WX, WX + 1, WX + 2, WX + 3, WX + 4
sX = 10
sLA = 12


def init_lists(t):
    a(f"""
    s_mul_i32 s{sT}, s{sW}, {LSTR}
    v_lshl_add_u32 v{t + 4}, v{vL}, 4, s{sT}
    v_mov_b32 v{t}, 0xa2710
    v_mov_b32 v{t + 1}, v{t}
    v_mov_b32 v{t + 2}, v{t}
    v_mov_b32 v{t + 3}, v{t}
    s_lshl_b32 s{sT + 1}, s{sW}, 1
    s_lshr_b32 s{sT}, s{sT}, 1
    s_add_u32 s{sT}, s{sT}, {BIAS + 4 * XC}
    v_mov_b32 v{t + 5}, s{sT + 1}
    v_mov_b32 v{t + 6}, s{sT}
    ds_write_b128 v{t + 4}, {v(t, 4)} offset:{L_LS}
    ds_write_b128 v{t + 4}, {v(t, 4)} offset:{L_LS + 1024}
    ds_write_b128 v{t + 4}, {v(t, 4)} offset:{L_LS + 2048}
    ds_write_b128 v{t + 4}, {v(t, 4)} offset:{L_LS + 3072}
    ds_write_b16 v{t + 5}, v{t + 6} offset:{L_CNT}
    ds_write_b16 v{t + 5}, v{t + 6} offset:{L_CNT + 16}
    ds_write_b32 v{vZ}, v{vZ} offset:{L_FLAG}
    ds_write_b32 v{vZ}, v{vZ} offset:{L_POS - 4}
    """)


def pos_dma():
    a(f"s_add_u32 m0, s{sT + 4}, {L_POS}")
    a("s_nop 0")
    a(f"buffer_load_dwordx4 v{vL16}, {s(rPOS, 4)}, s{sT + 4} offen lds")
    a(f"s_add_u32 s{sT + 4}, s{sT + 4}, 8192")


kernel_head("egnn_edge_kernel")
stamp(0, vST, 12)
a(f"""
s_cmp_ge_u32 s2, 256
s_cbranch_scc1 K2_END
s_load_dwordx2 s[22:23], s[0:1], 80
s_load_dwordx16 s[4:19], s[0:1], 0
s_load_dwordx2 s[20:21], s[0:1], 64
v_lshrrev_b32 v2, 6, v0
v_and_b32 v{vL}, 63, v0
v_readfirstlane_b32 s{sW}, v2
v_mov_b32 v{vZ}, 0
s_and_b32 s{sT + 3}, s2, 7
s_lshl_b32 s{sBIN}, s{sT + 3}, 5
s_lshr_b32 s{sT + 2}, s2, 3
s_add_u32 s{sBIN}, s{sBIN}, s{sT + 2}
""")
init_lists(P1)
a(f"""
v_bfe_u32 v{t2}, v{vL}, 2, 2
v_lshrrev_b32 v{t3}, 4, v{vL}
v_lshl_or_b32 v{t2}, v{t2}, 3, v{t3}
s_lshl_b32 s{sT}, s{sW}, 5
s_or_b32 s{sT}, s{sT}, s{sT + 3}
v_xor_b32 v{t2}, s{sT}, v{t2}
v_xor_b32 v{t3}, 4, v{t2}
v_and_b32 v{vJ}, 3, v0
s_lshl_b32 s{sT + 1}, s{sBIN}, 4
s_add_u32 s{sT + 1}, s{sT + 1}, {OFF_OFF}
v_lshl_add_u32 v{t1}, v{vJ}, 2, s{sT + 1}
s_movk_i32 s{sT + 1}, {OSTR}
v_mad_u32_u24 v{t0}, v{t2}, s{sT + 1}, v{t1}
v_mad_u32_u24 v{t1}, v{t3}, s{sT + 1}, v{t1}
s_movk_i32 s{sT}, {RSTR}
v_mad_u32_u24 v{vRB}, v{t2}, s{sT}, s{sT}
v_mad_u32_u24 v{vRB + 1}, v{t3}, s{sT}, s{sT}
v_mul_u32_u24 v{vCB}, 2500, v{t2}
v_mul_u32_u24 v{vCB + 1}, 2500, v{t3}
v_mul_u32_u24 v{vS12}, 12, v{vJ}
v_lshlrev_b32 v{vCA}, 2, v{vJ}
v_lshlrev_b32 v{vJ}, 4, v{vJ}
v_subrev_u32 v{vJ}, s{sT}, v{vJ}
v_lshlrev_b32 v{vL16}, 4, v{vL}
v_and_b32 v{e_}, 31, v{vL}
v_lshrrev_b32 v{hf_}, 5, v{vL}
v_lshlrev_b32 v{vPc}, 2, v{hf_}
s_lshl_b32 s{sT}, s{sBIN}, 3
s_add_u32 s{sT}, s{sT}, s{sW}
s_mul_i32 s{sT}, s{sT}, 625
s_add_u32 s{sT}, s{sT}, 127
s_lshr_b32 s{sT}, s{sT}, 7
v_add_u32 v{T}, s{sT}, v{e_}
v_mad_u32_u24 v{T}, v{T}, 6, v{vPc}
v_add_u32 v{T + 1}, -2, v{T}
v_and_b32 v{T + 2}, 1, v{e_}
v_lshlrev_b32 v{T + 2}, 6, v{T + 2}
v_and_or_b32 v{T + 2}, v{e_}, 30, v{T + 2}
v_add_u32 v{T + 2}, 0x4000, v{T + 2}
v_add_u32 v{t2}, {FR_OFF}, v{vL16}
s_lshl_b32 s{sT + 4}, s{sW}, 10
s_waitcnt lgkmcnt(0)
global_load_dwordx2 {v(ENT, 2)}, v{t0}, {s(sWS, 2)}
global_load_dwordx2 {v(ENT + 2, 2)}, v{t1}, {s(sWS, 2)}
s_barrier
""")
stamp(1, vST)
srd(rPOS, sPOS, 60000)
a(f"""
global_load_ushort v{W3}, v{T + 2}, {s(sWE, 2)}
global_load_ushort v{W3 + 1}, v{T + 2}, {s(sWE, 2)} offset:32
buffer_load_ushort v{M1 + 2}, v{T + 1}, {s(rPOS, 4)}, 0 offen
buffer_load_ushort v{M1 + 3}, v{T}, {s(rPOS, 4)}, 0 offen
global_load_dwordx4 {v(W4H, 4)}, v{t2}, {s(sWS, 2)} offset:{FR_W4H}
global_load_dwordx4 {v(W4H + 4, 4)}, v{t2}, {s(sWS, 2)} offset:{FR_W4H + 1024}
""")
if USE_LO:
    a(f"""
    global_load_dwordx4 {v(W4L, 4)}, v{t2}, {s(sWS, 2)} offset:{FR_W4L}
    global_load_dwordx4 {v(W4L + 4, 4)}, v{t2}, {s(sWS, 2)} offset:{FR_W4L + 1024}
    """)
NP1 = opt("np1", 3)
for k in range(NP1):
    pos_dma()
a(f"""
s_cmp_ge_u32 s{sW}, 3
s_cbranch_scc1 K2_NOPOS
""")
pos_dma()
a.label("K2_NOPOS")
N_AFTER_OFF = (4 if USE_LO else 2) + 4 + NP1
srd(rBP, sWS, 10000, BP_OFF, 128)
srd(rAP, sWS, 1280000, AP_OFF)
srd(rEA, sEAT, 0 if opt("noea", 0) else 640000, 0, 32)
a(f"""
s_lshl_b32 s{sT}, s{sW}, 11
s_add_u32 s{sEAd}, s{sT}, {L_EA}
v_lshl_add_u32 v{vDT}, v{vL}, 2, s{sEAd}
v_and_b32 v{vDS}, -16, v{vDT}
v_lshrrev_b32 v{cAi}, 3, v{vL}
v_lshlrev_b32 v{cS4}, 3, v{cAi}
v_and_b32 v{cBi}, 7, v{vL}
v_lshlrev_b32 v{cA2}, 1, v{cAi}
v_lshlrev_b32 v{cB2}, 1, v{cBi}
v_mul_u32_u24 v{cMid}, {LSTR // 2}, v{cAi}
v_add_u32 v{cMid}, {BIAS + 4 * XC}, v{cMid}
v_lshlrev_b32 v{cS1}, 3, v{e_}
s_sub_u32 s{sT + 5}, 11, s{sW}
s_cmp_lt_u32 s{sW}, 4
s_cselect_b32 s{sT + 5}, s{sW}, s{sT + 5}
s_mul_i32 s{sT + 2}, s{sT + 2}, 320
s_mul_i32 s{sT}, s{sW}, 40
s_add_u32 s{sT + 2}, s{sT + 2}, s{sT}
v_add_u32 v{T + 3}, s{sT + 2}, v{vL}
v_lshlrev_b32 v{vOo}, 1, v{e_}
v_lshl_or_b32 v{vOo}, v{hf_}, 7, v{vOo}
v_xor_b32 v{t0}, v{vL16}, v{vL}
v_and_b32 v{vI + 1}, 0x70, v{t0}
v_xor_b32 v{vI + 3}, 64, v{vI + 1}
v_mov_b32 v{vI + 5}, v{vI + 1}
v_mov_b32 v{vI + 7}, v{vI + 3}
v_and_b32 v{vEi + 1}, 16, v{t0}
v_lshlrev_b32 v{t0}, 2, v{vL}
v_or_b32 v{cE}, 4, v{t0}
s_lshl_b32 s{sT}, s{sW}, 12
s_add_u32 s{sBF}, s{sT}, {L_BF}
s_add_u32 s{sBF + 1}, s{sBF}, 1024
s_add_u32 s{sBF + 2}, s{sBF}, 2048
s_add_u32 s{sBF + 3}, s{sBF}, 3072
v_xor_b32 v{t0}, v{e_}, v{hf_}
v_cmp_eq_u32 vcc, 0, v{t0}
v_cmp_eq_u32 {s(sT, 2)}, 2, v{t0}
v_cmp_eq_u32 {s(sT + 2, 2)}, 4, v{t0}
v_mov_b32 v{t3}, 0x3f80
v_mul_u32_u24 v{vLUTb}, 96, v{hf_}
v_cndmask_b32 v{M1}, 0, v{t3}, vcc
v_cndmask_b32 v{M1}, v{M1}, 1.0, {s(sT, 2)}
v_cndmask_b32 v{M1 + 1}, 0, 1.0, {s(sT + 2, 2)}
v_cmp_gt_u32 {s(sLA, 2)}, 6, v{e_}
s_mul_i32 s{sT}, s{sW}, 192
s_add_u32 s{sT}, s{sT}, {L_LUT}
v_lshl_add_u32 v{M1 + 4}, v{e_}, 4, v{vLUTb}
v_add_u32 v{M1 + 4}, s{sT}, v{M1 + 4}
v_cvt_f32_u32 v{vKf}, v{hf_}
v_add_f32 v{vCf}, -1.0, v{vKf}
s_mov_b32 s{sT + 6}, 0xe3fff
""")
stamp(2, vST)
a(f"s_waitcnt vmcnt({N_AFTER_OFF})")
stamp(3, vST)
for i in range(2):
    a(f"v_mov_b32_dpp v{vJA + i}, v{ENT + 2 * i} quad_perm:[0,0,0,0] row_mask:0xf bank_mask:0xf")
    a(f"v_mov_b32_dpp v{vRM + i}, v{ENT + 2 * i + 1} quad_perm:[3,3,3,3] row_mask:0xf bank_mask:0xf")
for i in range(2):
    a(f"v_add_u32_sdwa v{vJA + i}, v{vJA + i}, v{vJ} dst_sel:DWORD src0_sel:WORD_0 src1_sel:DWORD")
    a(f"v_alignbit_b32 v{ENT + 2 * i + 1}, v{ENT + 2 * i + 1}, v{ENT + 2 * i}, 16")
for i in range(2):
    a(f"v_add_u32 v{vRB + i}, v{vRB + i}, v{vJA + i}")
    a(f"v_pk_sub_u16 v{t0 + i}, v{ENT + 2 * i + 1}, v{ENT + 2 * i}")
    a(f"v_sub_u32 v{vAX + i}, v{vRB + i}, v{vS12}")
WARM = opt("warm", 1)
a(f"""
global_load_dwordx4 {v(REC1, 4)}, v{vRB}, {s(sWS, 2)}
global_load_dwordx4 {v(REC1 + 4, 4)}, v{vRB + 1}, {s(sWS, 2)}
global_load_dword v{REC1 + 8}, v{vAX}, {s(sWS, 2)} offset:64
global_load_dword v{REC1 + 9}, v{vAX + 1}, {s(sWS, 2)} offset:64
global_load_dword v{REC1 + 10}, v{vAX}, {s(sWS, 2)} offset:80
global_load_dword v{REC1 + 11}, v{vAX + 1}, {s(sWS, 2)} offset:80
s_mov_b64 exec, 0xffff
ds_sub_rtn_u32 v{t2}, v{vCA}, v{t0} offset:{L_CNT + 16}
v_mov_b32 v{ENT}, v{ENT + 1}
s_not_b64 exec, exec
ds_add_rtn_u32 v{t2}, v{vCA}, v{t0} offset:{L_CNT}
s_mov_b64 exec, -1
ds_add_rtn_u32 v{t3}, v{vCA}, v{t1} offset:{L_CNT}
v_sub_u32_sdwa v{vRM}, v{vRM}, v{vJA} dst_sel:DWORD src0_sel:WORD_0 src1_sel:DWORD
v_sub_u32_sdwa v{vRM + 1}, v{vRM + 1}, v{vJA + 1} dst_sel:DWORD src0_sel:WORD_0 src1_sel:DWORD
s_movk_i32 s{sT}, {RSTR}
v_subrev_u32 v{vRM}, s{sT}, v{vRM}
v_subrev_u32 v{vRM + 1}, s{sT}, v{vRM + 1}
v_max_i32 v{t0}, v{vRM}, v{vRM + 1}
v_cmp_lt_i32 vcc, 0x80, v{t0}
s_cbranch_vccz K2_NOFLAG
v_mov_b32 v{t1}, 1
ds_write_b32 v{vZ}, v{t1} offset:{L_FLAG}
""")
a.label("K2_NOFLAG")
a(f"""
v_subrev_u32 v{t0}, 64, v{t0}
v_cmp_lt_i32 {s(sR2, 2)}, 16, v{t0}
v_cmp_lt_i32 {s(sR2 + 2, 2)}, 32, v{t0}
s_waitcnt lgkmcnt(0)
s_barrier
ds_read_u16 v{OH}, v{cA2} offset:{L_CNT}
ds_read_u16 v{OH + 1}, v{cA2} offset:{L_CNT + 16}
ds_read_u16 v{OH + 2}, v{cB2} offset:{L_CNT}
ds_read_u16 v{OH + 3}, v{cB2} offset:{L_CNT + 16}
ds_read_b32 v{t1}, v{vZ} offset:{L_FLAG}
v_pk_sub_u16 v{t2}, v{t2}, v{ENT}
v_pk_sub_u16 v{t3}, v{t3}, v{ENT + 2}
ds_write2st64_b32 v{vDT}, v{t2}, v{t3} offset1:1
""")
for k in range(7 - NP1):
    pos_dma()
a(f"""
s_waitcnt lgkmcnt(1)
v_sub_u32 v{t2}, v{OH}, v{OH + 1}
v_sub_u32 v{t3}, v{OH + 2}, v{OH + 3}
v_lshl_add_u32 v{t2}, v{t2}, 1, v{cAi}
v_lshl_add_u32 v{t3}, v{t3}, 1, v{cBi}
v_cmp_gt_u32 vcc, v{t3}, v{t2}
v_sub_u32 v{OH}, v{OH}, v{cMid}
v_sub_u32 v{OH + 2}, v{cMid}, v{OH + 1}
v_lshrrev_b64 {v(ENT, 2)}, v{cS4}, vcc
v_lshl_add_u32 v{OH}, v{t1}, 20, v{OH}
v_lshlrev_b32 v{OH + 2}, 2, v{OH + 2}
v_max_u32 v{OH}, v{OH}, v{OH + 2}
v_cmp_lt_u32 vcc, {4 * YC}, v{OH}
v_and_b32 v{ENT}, 0xff, v{ENT}
v_bcnt_u32_b32 v{ENT}, v{ENT}, 0
s_cmp_lg_u64 vcc, 0
v_cmp_eq_u32 vcc, s{sT + 5}, v{ENT}
s_cselect_b32 s{sMODE}, 1, 0
s_ff1_i32_b64 s{sG}, vcc
s_lshl_b32 s{sT}, s{sW}, 3
s_cmp_lg_u32 s{sMODE}, 0
s_cselect_b32 s{sG}, s{sT}, s{sG}
v_readlane_b32 s{sNT}, v{t2}, s{sG}
v_readlane_b32 s{sX}, v{OH + 1}, s{sG}
s_lshr_b32 s{sG}, s{sG}, 3
s_lshl_b32 s{sT}, s{sBIN}, 3
s_add_u32 s{sT}, s{sT}, s{sG}
s_mul_i32 s{sSZ}, s{sT}, 625
s_add_u32 s{sN0}, s{sSZ}, 127
s_lshr_b32 s{sN0}, s{sN0}, 7
s_lshl_b32 s{sT}, s{sN0}, 7
v_add_u32 v{vOo}, s{sT}, v{vOo}
""")
assert YC == 4 * XC
for fb in range(2):
    for j in range(3):
        a(f"buffer_load_ushort v{M0 + 3 * fb + j}, v{vOo}, {s(rAP, 4)}, 0 offen offset:{64 * fb + 256 * j}")
a(f"""
s_mov_b32 exec_hi, 0xff
buffer_load_dword v{vQ}, v{T + 3 if WARM else vZ}, {s(rBP, 4)}, 0 idxen
s_mov_b32 exec_hi, -1
""")
N_AFTER_REC = 7 - NP1 + 6 + 1
for i in range(2):
    for k in range(4):
        a(f"v_cmp_lt_i32 {s(sM + 2 * (4 * i + k), 2)}, {4 * k}, v{vRM + i}")
    a(f"v_sub_u32 v{vJX + i}, v{vJA + i}, v{vS12}")
    a(f"v_add3_u32 v{vRX + i}, v{vRM + i}, v{vS12}, -16")
a(f"""
v_cmp_lt_i32 s[16:17], 48, v{vRX}
v_cmp_lt_i32 s[18:19], 48, v{vRX + 1}
s_mul_i32 s{sT}, s{sG}, 192
s_add_u32 s{sT}, s{sT}, {L_LUT}
v_add_u32 v{vLUTb}, s{sT}, v{vLUTb}
s_mul_i32 s{sT}, s{sW}, {32 * SPR}
s_add_u32 s{sT}, s{sT}, {L_SP}
v_mad_u32_u24 v{t0}, v{e_}, {SPR}, v{vPc}
v_add_u32 v{vSb}, s{sT}, v{t0}
s_waitcnt vmcnt({N_AFTER_REC})
v_lshlrev_b32 v{M1 + 2}, 16, v{M1 + 2}
v_lshlrev_b32 v{M1 + 3}, 16, v{M1 + 3}
v_fma_f32 v{M1 + 2}, v{M1 + 2}, v{vKf}, -v{vCf}
s_cmp_lg_u32 s{sMODE}, 0
s_cbranch_scc1 K2_NOSCAT
""")
stamp(4, vST)


def scatter(recs, sets, ks, masks):
    n = len(recs)
    for i in range(n):
        a(f"v_lshrrev_b32 v{RA + i}, 13, v{recs[i]}")
        a(f"v_and_or_b32 v{RA + i}, v{RA + i}, 14, v{vDS}")
    for i in range(n):
        a(f"ds_read_u16 v{RA + i}, v{RA + i} offset:{256 * sets[i]}")
    for i in range(n):
        a(f"v_lshrrev_b32 v{PAIR + 2 * i + 1}, 20, v{recs[i]}")
        a(f"v_add_u32 v{PAIR + 2 * i + 1}, v{vCB + sets[i]}, v{PAIR + 2 * i + 1}")
        a(f"v_and_b32 v{PAIR + 2 * i}, s{sT + 6}, v{recs[i]}")
    a("s_waitcnt lgkmcnt(0)")
    for i in range(n):
        a(f"v_add_lshl_u32 v{RA + i}, v{RA + i}, v{(vJA if ks[i] < 16 else vJX) + sets[i]}, 1")
    for i in range(n):
        a(f"s_mov_b64 exec, {masks[i]}")
        a(f"ds_write_b64 v{RA + i}, {v(PAIR + 2 * i, 2)} offset:{L_LS - 256 + 8 * ks[i]}")
    a("s_mov_b64 exec, -1")


scatter([REC1 + i for i in range(10)], [0, 0, 0, 0, 1, 1, 1, 1, 0, 1], [0, 1, 2, 3, 0, 1, 2, 3, 16, 16],
        [s(sM + 2 * i, 2) for i in range(8)] + ["s[16:17]", "s[18:19]"])
a(f"""
s_cmp_lg_u64 {s(sR2, 2)}, 0
s_cbranch_scc1 K2_R2
""")
a.label("K2_NOSCAT")
a(f"""
s_mov_b64 exec, {s(sLA, 2)}
ds_write_b128 v{M1 + 4}, {v(M1, 4)}
s_mov_b64 exec, -1
s_cmp_lg_u32 s{sMODE}, 0
s_cbranch_scc1 K2_SLOW_INIT
s_waitcnt vmcnt(7)
""")
a.label("K2_PROCESS")
a(f"""
s_sub_u32 s{sT + 1}, s{sX}, {BIAS}
s_lshl_b32 s{sT + 1}, s{sT + 1}, 1
v_add_u32 v{pS4}, s{sT + 1}, v{cS4}
v_add_u32 v{pE}, s{sT + 1}, v{cE}
v_add_u32 v{pS1}, s{sT + 1}, v{cS1}
s_mul_i32 s{sT + 2}, s{sW}, {32 * SPR}
s_add_u32 s{sT + 2}, s{sT + 2}, {L_SP}
v_mad_u32_u24 v{t2}, v{vL}, 28, s{sT + 2}
s_waitcnt lgkmcnt(0)
s_barrier
""")
stamp(5, vST)
idx_rd = lambda off: [f"ds_read_u16 v{vI + 2 * i}, v{pS4} offset:{L_LS + off + 64 * i}" for i in range(4)]
a(f"ds_read_b32 v{vEi}, v{pE} offset:{L_LS}")
for x in idx_rd(0):
    a(x)
a(f"""
ds_read_b32 v{vRec}, v{pS1} offset:{L_LS}
ds_write2_b32 v{t2}, v{vZ}, v{vZ} offset0:0 offset1:1
ds_write2_b32 v{t2}, v{vZ}, v{vZ} offset0:2 offset1:3
ds_write2_b32 v{t2}, v{vZ}, v{vZ} offset0:4 offset1:5
ds_write_b32 v{t2}, v{vZ} offset:24
s_setprio 3
""")

EAPOL = OPT.get("eapol", "")
BPPOL = OPT.get("bppol", "")


def dma_bp(i):
    return [f"s_mov_b32 m0, s{sBF + i}", "s_nop 0", f"buffer_load_dwordx4 {v(vI + 2 * i, 2)}, {s(rBP, 4)}, 0 idxen offen {BPPOL} lds"]


def dma_ea(reg):
    return [f"s_mov_b32 m0, s{sEAd}", f"s_xor_b32 s{sEAd}, s{sEAd}, 1024", f"buffer_load_dwordx4 {v(reg, 2)}, {s(rEA, 4)}, 0 idxen offen {EAPOL} lds"]


prep_addr = [f"v_mad_u32_u16 v{vPa}, v{vRec}, 6, v{vPc}", f"v_mad_u32_u16 v{vLa}, v{vRec}, 8, v{vLUTb} op_sel:[1,0,0,0]"]
prep_rd = [f"ds_read_u16_d16_hi v{vAs}, v{vPa} offset:{L_POS - 2}", f"ds_read_u16_d16_hi v{vBs}, v{vPa} offset:{L_POS}", f"ds_read_b128 {v(OH, 4)}, v{vLa}"]
prep_sa = f"v_mad_u32_u16 v{vSaddr}, v{vRec}, 4, v{vSb} op_sel:[1,0,0,0]"
prep_v = [f"v_fma_f32 v{OH + 2}, -v{vAs}, v{vKf}, v{OH + 2}", f"v_sub_f32 v{OH + 3}, v{OH + 3}, v{vBs}",
          f"v_cvt_pk_bf16_f32 v{vQ}, v{OH + 2}, v{OH + 3}",
          f"v_fma_f32 v{OH + 2}, v{OH + 2}, v{OH + 2}, v{vCf}", f"v_fmac_f32 v{OH + 2}, v{OH + 3}, v{OH + 3}", f"v_mul_f32 v{OH + 2}, s{sNL}, v{OH + 2}",
          f"v_cvt_pk_bf16_f32 v{OH + 1}, v{OH + 1}, v{OH + 2}"]
s_wr = f"ds_write_b32 v{vSaddr}, v{vQ}"
s_clr = f"ds_write_b32 v{vSaddr}, v{vZ}"
rd_frag = [f"ds_read_b128 {v(EA, 4)}, v{vEArd}", f"ds_read_b128 {v(BF0, 4)}, v{vBF}", f"ds_read_b128 {v(BF0 + 4, 4)}, v{vBF + 1}",
           f"ds_read_b128 {v(BF1, 4)}, v{vBF + 2}", f"ds_read_b128 {v(BF1 + 4, 4)}, v{vBF + 3}"]
rd_tr = [f"ds_read_b64_tr_b16 {v(SP + 2 * q, 2)}, v{vTR} offset:{q * 8 * SPR}" for q in range(4)]


def mf(d, x, y, c=None, n=4):
    op = "v_mfma_f32_32x32x16_bf16" if n == 4 else "v_mfma_f32_32x32x8_bf16"
    return f"{op} {v(d, 16)}, {v(x, n)}, {v(y, n)}, {'0' if c == 0 else v(d, 16)}"


def emit(L):
    for x in L:
        a(x)


a("s_waitcnt lgkmcnt(5)")
emit(dma_ea(vEi))
for i in range(4):
    emit(dma_bp(i))
a("s_setprio 0")
a("s_waitcnt lgkmcnt(4)")
emit(prep_addr + [prep_sa])
a(f"""
v_mov_b32 v{vAs}, 0
v_mov_b32 v{vBs}, 0
""")
emit(prep_rd)
emit(idx_rd(256))
vE2 = cKa
a(f"""
ds_read_b32 v{vEi}, v{pE} offset:{L_LS + 256}
ds_read_b32 v{vE2}, v{pE} offset:{L_LS + 512}
s_add_u32 s{sNT}, s{sNT}, 248
s_bfe_u32 s{sQ}, s{sNT}, 0x20006
s_lshr_b32 s{sNT}, s{sNT}, 8
s_cmp_lg_u32 s{sMODE}, 2
s_cbranch_scc0 K2_NOCONST
v_mov_b32 v{vE2 + 1}, v{vEi + 1}
v_lshrrev_b32 v{t0}, 1, v{e_}
v_xor_b32 v{t0}, v{t0}, v{hf_}
v_and_b32 v{t0}, 7, v{t0}
v_lshlrev_b32 v{t0}, 4, v{t0}
v_lshl_or_b32 v{t0}, v{e_}, 7, v{t0}
v_add_u32 v{vBF}, s{sBF}, v{t0}
v_xor_b32 v{vBF + 1}, 32, v{vBF}
v_xor_b32 v{vBF + 2}, 64, v{vBF}
v_xor_b32 v{vBF + 3}, 0x60, v{vBF}
v_bfe_u32 v{t0}, v{vL}, 2, 2
v_or_b32 v{t0}, v{vPc}, v{t0}
v_mul_u32_u24 v{t0}, {SPR}, v{t0}
v_bfe_u32 v{t1}, v{vL}, 4, 1
v_and_b32 v{t2}, 3, v{vL}
v_lshl_or_b32 v{t1}, v{t1}, 2, v{t2}
v_min_u32 v{t1}, 5, v{t1}
v_lshl_add_u32 v{t0}, v{t1}, 3, v{t0}
v_add_u32 v{vTR}, s{sT + 2}, v{t0}
v_lshrrev_b32 v{t0}, 3, v{vL}
v_xor_b32 v{t0}, v{t0}, v{hf_}
v_and_b32 v{t2}, 1, v{t0}
v_lshlrev_b32 v{t0}, 4, v{t2}
v_lshl_or_b32 v{cEA}, v{e_}, 5, v{t0}
v_lshrrev_b32 v{t0}, 2, v{e_}
v_sub_u32 v{t0}, v{e_}, v{t0}
s_mul_i32 s{sT}, s{sN0}, 3
s_sub_u32 s{sT}, s{sT}, 1
v_add_lshl_u32 v{vPo}, v{t0}, s{sT}, 1
s_add_u32 s{sSZ}, s{sSZ}, {127 + 625}
s_lshr_b32 s{sSZ}, s{sSZ}, 7
s_sub_u32 s{sSZ}, s{sSZ}, s{sN0}
v_and_b32 v{t0}, 1, v{e_}
v_lshlrev_b32 v{t0}, 4, v{t0}
v_mov_b32 v{t3}, 0x3f80
v_lshlrev_b32 v{t0}, v{t0}, v{t3}
v_bfe_u32 v{t1}, v{e_}, 1, 2
v_lshl_or_b32 v{t1}, v{t2}, 3, v{t1}
v_lshrrev_b32 v{t2}, 4, v{e_}
v_lshl_or_b32 v{t1}, v{t2}, 2, v{t1}
s_movk_i32 s{sI1}, {0 if opt("bench", 0) else 256}
s_mov_b32 s{sI1 + 1}, s{sI1}
s_mov_b32 s{sI2}, s{sI1}
s_mov_b32 s{sLN2}, {NLN2:#x}
s_mov_b32 s{sLN2 + 1}, s{sLN2}
s_mov_b32 s{sNL}, {NLOG2E:#x}
""")
srd(rH, sH, 1280000)
srd(rOUT, sOUT, 1340000)
for r in range(8):
    a(f"v_cmp_eq_u32 vcc, {r}, v{t1}")
    a(f"v_pk_mov_b32 {v(ACC0 + 4 * r, 2)}, 0, 0")
    a(f"v_pk_mov_b32 {v(ACC0 + 4 * r + 2, 2)}, 0, 0")
    a(f"v_cndmask_b32 v{PERM + r}, 0, v{t0}, vcc")
a(f"""
s_waitcnt vmcnt(6)
v_lshl_or_b32 v{OB}, v{M0 + 1}, 16, v{M0}
v_lshl_or_b32 v{OB + 1}, v{W3}, 16, v{M0 + 2}
v_lshl_or_b32 v{OB + 2}, v{M0 + 4}, 16, v{M0 + 3}
v_lshl_or_b32 v{OB + 3}, v{W3 + 1}, 16, v{M0 + 5}
v_pk_mov_b32 {v(M0 + 6, 2)}, 0, 0
""")
a.label("K2_NOCONST")
a(f"""
s_mov_b32 s{sI2 + 1}, -1024
s_xor_b32 s{sT}, s{sEAd}, 1024
v_add_u32 v{vEArd}, s{sT}, v{cEA}
""")
for r in range(4):
    a(f"v_pk_mov_b32 {v(SP + 2 * r, 2)}, 0, 0")
    a(f"v_pk_mov_b32 {v(M1 + 2 * r, 2)}, 0, 0")
for r in range(2):
    a(f"v_pk_mov_b32 {v(T + 2 * r, 2)}, 0, 0")
NB2 = opt("nb2", 0)
sDB = 16
DB = (L_POS + 127) // 128 * 128 - L_BF
tog_s = [f"s_add_u32 s{sBF + i}, s{sBF + i}, s{sDB}" for i in range(4)]
if NB2:
    a(f"s_mov_b32 s{sDB}, {DB}")
    a(f"s_mov_b32 s{sDB + 1}, {DB - 1}")
    a("s_waitcnt lgkmcnt(0)")
    emit(tog_s)
    for i in range(4):
        emit(dma_bp(i))
    emit([f"s_sub_u32 s{sBF + i}, s{sBF + i}, s{sDB}" for i in range(4)])
    emit(idx_rd(512))
EARLY1 = opt("early1", 0)
if EARLY1:
    a("s_waitcnt lgkmcnt(0)")
    emit(dma_ea(vEi))
stamp(6, vST)
a(f"s_waitcnt vmcnt({EARLY1 + 4 * NB2}) lgkmcnt(0)")
stamp(7, vST)
emit(rd_frag)
emit(prep_v + [s_wr])
a(f"""
v_add_u32 v{vEArd}, 0x400, v{vEArd}
s_waitcnt lgkmcnt(5)
""")
a(mf(P0, EA, W4H, 0))
if USE_LO:
    a(mf(P0, EA, W4L))
a("s_waitcnt lgkmcnt(1)")
a(mf(P0, BF0, PERM))
a(mf(P0, BF0 + 4, PERM + 4))
for i in range(4):
    emit(dma_bp(i))
a(mf(P0, OH, OB, n=2))
if not EARLY1:
    emit(dma_ea(vEi))
tog_v = [f"v_lshl_add_u64 {v(vBF + 2 * i, 2)}, {v(vBF + 2 * i, 2)}, 0, {s(sDB, 2)}" for i in range(2)]
tog_n = [f"s_xor_b32 s{sDB}, s{sDB}, {(DB ^ -DB) & 0xffffffff}", f"s_xor_b32 s{sDB + 1}, s{sDB + 1}, {((DB - 1) ^ -DB) & 0xffffffff}"]
if NB2:
    emit(tog_s + tog_v + tog_n)
if opt("bench", 0):
    a(f"s_mov_b32 s{sNT}, {opt('bench', 0)}")
LATE_AT = opt("late", 4)
PRIO = opt("prio", 1)
stamp(8, vST, 13)
if STAMPS:
    a(f"v_writelane_b32 v{vST}, s{sNT}, 15")
if PRIO:
    a("s_setprio 3")
sEV = 11
a(f"""
s_mov_b32 s{sEV}, s{sNT}
s_mov_b32 s{sLA}, 1
s_cmp_ge_u32 s{sNT}, {LATE_AT + 1}
s_cbranch_scc1 K2_LOOP
s_call_b64 {s(sRET, 2)}, K2_LATE
s_cmp_eq_u32 s{sNT}, 0
s_cbranch_scc1 K2_DRAINED
s_cmp_eq_u32 s{sNT}, 1
s_cbranch_scc1 K2_TAIL
""")


def silu_slots(P, M, Mprev):
    sl = []
    for k in range(4):
        mdst = (Mprev + 6) if k == 0 else (M + 2 * (k - 1))
        pre = [f"v_cvt_pk_bf16_f32 v{mdst}, v{T}, v{T + 1}", f"v_cvt_pk_bf16_f32 v{mdst + 1}, v{T + 2}, v{T + 3}"]
        tr = [f"v_exp_f32 v{T + i}, v{P + 4 * k + i}" for i in range(4)]
        pk = [f"v_pk_add_f32 {v(T + 2 * i, 2)}, {v(T + 2 * i, 2)}, 1.0 op_sel_hi:[1,0]" for i in range(2)]
        sl.append(pre + tr + pk)
        tr = [f"v_rcp_f32 v{T + i}, v{T + i}" for i in range(4)]
        pk = [f"v_pk_mul_f32 {v(T + 2 * i, 2)}, {v(T + 2 * i, 2)}, {v(P + 4 * k + 2 * i, 2)}" for i in range(2)]
        sl.append(tr + pk)
    return sl


def emit_slot(before, mfma, after, slot):
    flt = lambda L: [x for x in L if not (opt("nodma", 0) and x.startswith("buffer_")) and not (opt("nods", 0) and x.startswith("ds_"))
                     and not (opt("novx", 0) and x.startswith("v_")) and not any(x.startswith(y) for y in OPT.get("drop", "@").split(","))]
    emit(flt(before))
    if mfma:
        a(mfma)
    emit(flt(after))
    emit(slot)


a.raw(".p2align 3")
a.label("K2_LOOP")
A_ = silu_slots(P0, M0, M1)
B_ = silu_slots(P1, M1, M0)
lo = lambda x: x if USE_LO else None
G1 = [f"ds_read_b32 v{vRec}, v{pS1} offset:{L_LS + 256}"] + idx_rd(512 + 256 * NB2) + [f"ds_read_b32 v{vEi}, v{pE} offset:{L_LS + 768}"]
emit_slot([], mf(P1, BF1, PERM, 0), G1, A_[0])
emit_slot([], mf(P1, BF1 + 4, PERM + 4), [f"v_lshl_add_u64 {v(pS1, 2)}, {v(pS1, 2)}, 0, {s(sI1, 2)}"], A_[1])
emit_slot([], mf(P1, EA, W4H + 4), [], A_[2])
emit_slot([], lo(mf(P1, EA, W4L + 4)), ["s_waitcnt lgkmcnt(0)"] + prep_addr, A_[3])
emit_slot([], mf(ACC1, M1, SP), [f"s_cmp_eq_u32 s{sNT}, s{sEV}", "s_cbranch_scc1 K2_EVENT", "K2_EVENT_BACK:"], A_[4])
emit_slot([], mf(P1, OH, OB + 2, n=2), [], A_[5])
emit_slot([], mf(ACC1, M1 + 4, SP + 4), [f"s_waitcnt vmcnt({1 + 4 * NB2})"] + rd_frag[:1] + prep_rd + rd_frag[1:] + rd_tr + [s_clr], A_[6])
emit_slot([], None, [prep_sa, f"v_lshl_add_u64 {v(pE, 2)}, {v(pE, 2)}, 0, {s(sI2, 2)}"], A_[7])
emit_slot([], None, [f"s_xor_b32 s{sI2 + 1}, s{sI2 + 1}, 0xfffff800", f"s_cmp_eq_u32 s{sNT}, s{sLA}", "s_cbranch_scc1 K2_LATE_IN", "K2_LATE_BACK:"], B_[0])
emit_slot(["s_waitcnt lgkmcnt(9)"], mf(P0, EA, W4H, 0), prep_v[:3], B_[1])
emit_slot([], lo(mf(P0, EA, W4L)), ["s_waitcnt lgkmcnt(5)", s_wr] + dma_bp(0) + dma_bp(1) + dma_bp(2) + dma_bp(3) + dma_ea(vEi), B_[2])
emit_slot([], mf(P0, BF0, PERM), prep_v[3:], B_[3])
emit_slot([], mf(P0, BF0 + 4, PERM + 4), tog_s + tog_v + tog_n if NB2 else [], B_[4])
emit_slot(["s_waitcnt lgkmcnt(2)"], mf(ACC0, M0, SP), [], B_[5])
emit_slot([], mf(P0, OH, OB, n=2), [], B_[6])
emit_slot([f"s_sub_u32 s{sNT}, s{sNT}, 1", f"s_cmp_lg_u32 s{sNT}, 1"], mf(ACC0, M0 + 4, SP + 4), [], B_[7])
a("s_cbranch_scc1 K2_LOOP")

a.label("K2_TAIL")
if PRIO:
    a("s_setprio 0")


def tail_quad(tag, P, M, k, m1, m2):
    ex = [f"v_exp_f32 v{T + i}, v{P + 4 * k + i}" for i in range(4)] + [f"v_pk_add_f32 {v(T + 2 * i, 2)}, {v(T + 2 * i, 2)}, 1.0 op_sel_hi:[1,0]" for i in range(2)]
    rc = [f"v_rcp_f32 v{T + i}, v{T + i}" for i in range(4)] + [f"v_pk_mul_f32 {v(T + 2 * i, 2)}, {v(T + 2 * i, 2)}, {v(P + 4 * k + 2 * i, 2)}" for i in range(2)]
    rc += [f"v_cvt_pk_bf16_f32 v{M + 2 * k}, v{T}, v{T + 1}", f"v_cvt_pk_bf16_f32 v{M + 2 * k + 1}, v{T + 2}, v{T + 3}"]
    if k:
        a(f"s_cmp_lt_u32 s{sQ}, {k}")
    emit(m1)
    if k and m2:
        a(f"s_cbranch_scc1 {tag}{k}a")
    elif k:
        a(f"s_cbranch_scc1 {tag}{k}b")
    emit(ex)
    if k and m2:
        a.label(f"{tag}{k}a")
    emit(m2)
    if k and m2:
        a(f"s_cbranch_scc1 {tag}{k}b")
    emit(rc)
    if k:
        a.label(f"{tag}{k}b")


a(mf(P1, OH, OB + 2, 0, n=2))
a(f"""
v_cvt_pk_bf16_f32 v{M1 + 6}, v{T}, v{T + 1}
v_cvt_pk_bf16_f32 v{M1 + 7}, v{T + 2}, v{T + 3}
""")
tail_quad("K2_TA", P0, M0, 0, ["s_nop 1"], [mf(ACC1, M1, SP)])
tail_quad("K2_TA", P0, M0, 1, [mf(ACC1, M1 + 4, SP + 4)] + rd_tr, [mf(P1, BF1, PERM)])
tail_quad("K2_TA", P0, M0, 2, [mf(P1, BF1 + 4, PERM + 4)], [mf(P1, EA, W4H + 4)] + ([mf(P1, EA, W4L + 4)] if USE_LO else []))
tail_quad("K2_TA", P0, M0, 3, [], [])
a("s_waitcnt lgkmcnt(0)")
a(mf(ACC0, M0, SP))
a("s_nop 6")
tail_quad("K2_TB", P1, M1, 0, [], [mf(ACC0, M0 + 4, SP + 4)])
tail_quad("K2_TB", P1, M1, 1, [], [])
tail_quad("K2_TB", P1, M1, 2, ["s_nop 0", mf(ACC1, M1, SP)], [])
tail_quad("K2_TB", P1, M1, 3, [], [])
a("s_nop 1")
a(mf(ACC1, M1 + 4, SP + 4))
a.label("K2_DRAINED")
stamp(9, vST, 14)
a(f"""
s_cmp_lg_u32 s{sMODE}, 0
s_cbranch_scc1 K2_SLOW_NEXT
""")
a.label("K2_EPI")
AF = M0
PD = BF0
for fb, ACC in enumerate((ACC0, ACC1)):
    for i in range(8):
        a(f"v_pk_mul_f32 {v(ACC + 2 * i, 2)}, {v(ACC + 2 * i, 2)}, {s(sLN2, 2)}")
    for i in range(8):
        a(f"v_cvt_pk_bf16_f32 v{AF + 8 * fb + i}, v{ACC + 2 * i}, v{ACC + 2 * i + 1}")
a("s_waitcnt vmcnt(0)")
a("s_nop 0")
for st in range(4):
    a(mf(P0, AF + 4 * st, WH2 + 8 * st, 0 if st == 0 else None))
for st in range(4):
    a(mf(P1, AF + 4 * st, WH2 + 8 * st + 4, 0 if st == 0 else None))
for st in range(4):
    a(mf(PD, WX + 4 * st, AF + 4 * st, 0 if st == 0 else None))
for j in range(3):
    a(f"v_and_b32 v{DD + 3 + j}, 0xffff0000, v{DD + j}")
    a(f"v_lshlrev_b32 v{DD + j}, 16, v{DD + j}")
for i in range(6):
    a(f"v_lshlrev_b32 v{HR + i}, 16, v{HR + i}")
a(f"v_lshlrev_b32 v{PR}, 16, v{PR}")
E_ = ACC0
for fb, P in enumerate((P0, P1)):
    for j in range(3):
        a(f"v_add_f32 v{DD + 3 * fb + j}, v{DD + 3 * fb + j}, v{P + 4 * j}")
for i in range(6):
    a(f"v_mul_f32 v{E_ + i}, s{sNL}, v{DD + i}")
for i in range(6):
    a(f"v_exp_f32 v{E_ + i}, v{E_ + i}")
for i in range(6):
    a(f"v_add_f32 v{E_ + i}, 1.0, v{E_ + i}")
for i in range(6):
    a(f"v_rcp_f32 v{E_ + i}, v{E_ + i}")
for i in range(6):
    a(f"v_fmac_f32 v{HR + i}, v{DD + i}, v{E_ + i}")
for i in range(3):
    a(f"v_cvt_pk_bf16_f32 v{HR + i}, v{HR + i}, v{HR + 3 + i}")
a(f"""
v_add_f32 v{PR}, v{PR}, v{PD}
s_mov_b32 s{sT}, 1280000
v_cvt_pk_bf16_f32 v{PR}, v{PR}, v{PR}
""")
for j in range(2):
    a(f"buffer_store_short v{HR + j}, v{vOo}, {s(rOUT, 4)}, 0 offen offset:{256 * j}")
    a(f"buffer_store_short_d16_hi v{HR + j}, v{vOo}, {s(rOUT, 4)}, 0 offen offset:{256 * j + 64}")
a(f"""
s_cmp_eq_u32 s{sSZ}, 5
s_mov_b32 exec_hi, 0
s_cbranch_scc0 K2_FOUR
buffer_store_short v{HR + 2}, v{vOo}, {s(rOUT, 4)}, 0 offen offset:512
buffer_store_short_d16_hi v{HR + 2}, v{vOo}, {s(rOUT, 4)}, 0 offen offset:576
""")
a.label("K2_FOUR")
a(f"""
s_movk_i32 s{sT + 1}, 0x7777
s_cselect_b32 s{sT + 1}, 0x77777, s{sT + 1}
s_lshl_b32 exec_lo, s{sT + 1}, 1
buffer_store_short v{PR}, v{vPo}, {s(rOUT, 4)}, s{sT} offen
""")
stamp(10, vST)
if STAMPS:
    a("s_waitcnt vmcnt(0)")
stamp(11, vST)
stamp_out(vST, sWS, sW, 1 << 19)
a.label("K2_END")
a("s_endpgm")

a.label("K2_EVENT")
a(f"""
s_cmp_eq_u32 s{sLA}, 1
s_cbranch_scc0 K2_EVENT2
""")
emit(dma_ea(vE2))
a(f"""
s_cmp_gt_u32 s{sNT}, {LATE_AT}
s_cselect_b32 s{sLA}, {LATE_AT}, 0
s_mov_b32 s{sEV}, {opt("p1at", 2)}
s_branch K2_EVENT_BACK
""")
a.label("K2_EVENT2")
if PRIO:
    a("s_setprio 1")
a("s_branch K2_EVENT_BACK")
a.label("K2_LATE_IN")
a(f"s_call_b64 {s(sRET, 2)}, K2_LATE")
if PRIO:
    a("s_setprio 2")
a("s_branch K2_LATE_BACK")
a.label("K2_R2")
a(f"""
v_cmp_lt_i32 {s(sM, 2)}, 64, v{vRX}
v_cmp_lt_i32 {s(sM + 2, 2)}, 64, v{vRX + 1}
""")
scatter([REC1 + 10, REC1 + 11], [0, 1], [20, 20], [s(sM, 2), s(sM + 2, 2)])
a(f"""
s_cmp_eq_u64 {s(sR2 + 2, 2)}, 0
s_cbranch_scc1 K2_NOSCAT
global_load_dword v{REC1}, v{vAX}, {s(sWS, 2)} offset:96
global_load_dword v{REC1 + 1}, v{vAX + 1}, {s(sWS, 2)} offset:96
global_load_dword v{REC1 + 2}, v{vAX}, {s(sWS, 2)} offset:112
global_load_dword v{REC1 + 3}, v{vAX + 1}, {s(sWS, 2)} offset:112
v_subrev_u32 v{vRX}, 64, v{vRX}
v_subrev_u32 v{vRX + 1}, 64, v{vRX + 1}
v_cmp_lt_i32 {s(sM, 2)}, 16, v{vRX}
v_cmp_lt_i32 {s(sM + 2, 2)}, 16, v{vRX + 1}
v_cmp_lt_i32 {s(sM + 4, 2)}, 32, v{vRX}
v_cmp_lt_i32 {s(sM + 6, 2)}, 32, v{vRX + 1}
s_waitcnt vmcnt(0)
""")
scatter([REC1 + i for i in range(4)], [0, 1, 0, 1], [24, 24, 28, 28], [s(sM + 2 * i, 2) for i in range(4)])
a("s_branch K2_NOSCAT")
a.label("K2_LATE")
a(f"""
v_lshlrev_b32 v{DD + 3}, 4, v{vL}
v_add_u32 v{DD + 3}, {FR_OFF + FR_WH2}, v{DD + 3}
v_add_u32 v{DD + 4}, 0x1000, v{DD + 3}
v_lshlrev_b32 v{DD + 5}, 2, v{vPc}
v_add_u32 v{DD + 5}, {FR_OFF + FR_WX}, v{DD + 5}
v_lshrrev_b32 v{PR}, 2, v{cS1}
s_mov_b32 s{sT}, {DP_OFF}
v_add3_u32 v{PR}, v{PR}, v{vOo}, s{sT}
""")
for i in range(8):
    a(f"global_load_dwordx4 {v(WH2 + 4 * i, 4)}, v{DD + 3 + (i >> 2)}, {s(sWS, 2)} offset:{(i & 3) * 1024}")
for i in range(4):
    a(f"global_load_dwordx4 {v(WX + 4 * i, 4)}, v{DD + 5}, {s(sWS, 2)} offset:{i * 32}")
for j in range(3):
    a(f"global_load_dword v{DD + j}, v{PR}, {s(sWS, 2)} offset:{256 * j}")
    for fb in range(2):
        a(f"buffer_load_ushort v{HR + 3 * fb + j}, v{vOo}, {s(rH, 4)}, 0 offen offset:{64 * fb + 256 * j}")
a(f"buffer_load_ushort v{PR}, v{vPo}, {s(rPOS, 4)}, 0 offen")
a(f"s_setpc_b64 {s(sRET, 2)}")

a.label("K2_SLOW_INIT")
a(f"""
s_mov_b32 s{sC}, 0
s_branch K2_SLOW_CHUNK
""")
a.label("K2_SLOW_NEXT")
a(f"""
s_waitcnt vmcnt(0) lgkmcnt(0)
s_mov_b32 s{sMODE}, 2
s_add_u32 s{sJ}, s{sJ}, {4 * YC}
s_cmp_lt_u32 s{sJ}, s{sEND}
s_cbranch_scc1 K2_SLOW_ROUND
s_add_u32 s{sC}, s{sC}, 1
s_cmp_ge_u32 s{sC}, 256
s_cbranch_scc1 K2_EPI
K2_SLOW_CHUNK:
s_mul_i32 s{sT}, s{sC}, {OSTR}
s_lshl_b32 s{sT + 1}, s{sBIN}, 4
s_add_u32 s{sT}, s{sT}, s{sT + 1}
s_add_u32 s{sT}, s{sT}, {OFF_OFF}
s_add_u32 s{sT + 1}, s{sT}, 16
s_load_dword s{sT + 2}, {s(sWS, 2)}, s{sT}
s_load_dword s{sT + 3}, {s(sWS, 2)}, s{sT + 1}
s_waitcnt lgkmcnt(0)
s_and_b32 s{sJ}, s{sT + 2}, 0xffff
s_and_b32 s{sEND}, s{sT + 3}, 0xffff
""")
a.label("K2_SLOW_ROUND")
a("s_barrier")
init_lists(P1)
a(f"""
s_mul_i32 s{sT + 2}, s{sC}, 2500
s_mul_i32 s{sT + 3}, s{sC}, {RSTR}
v_lshl_add_u32 v{t0}, v0, 2, s{sJ}
s_add_u32 s{sT + 4}, s{sJ}, {4 * YC}
s_min_u32 s{sT + 4}, s{sT + 4}, s{sEND}
v_cmp_gt_u32 vcc, s{sT + 4}, v{t0}
v_add_u32 v{t0}, s{sT + 3}, v{t0}
global_load_dword v{REC1}, v{t0}, {s(sWS, 2)}
s_lshl_b32 s{sT}, s{sW}, 11
s_add_u32 s{sEAd}, s{sT}, {L_EA}
s_waitcnt vmcnt(0) lgkmcnt(0)
s_barrier
v_lshrrev_b32 v{t0}, 13, v{REC1}
v_and_b32 v{t0}, 12, v{t0}
v_bfe_u32 v{t1}, v{REC1}, 14, 1
v_lshlrev_b32 v{t1}, 4, v{t1}
v_lshlrev_b32 v{t2}, v{t1}, 4
v_lshrrev_b32 v{RA + 1}, 20, v{REC1}
v_add_u32 v{RA + 1}, s{sT + 2}, v{RA + 1}
v_and_b32 v{RA}, s{sT + 6}, v{REC1}
s_mov_b64 exec, vcc
ds_add_rtn_u32 v{t0}, v{t0}, v{t2} offset:{L_CNT}
s_waitcnt lgkmcnt(0)
v_bfe_u32 v{t0}, v{t0}, v{t1}, 16
v_subrev_u32 v{t0}, {RSTR}, v{t0}
v_lshlrev_b32 v{t0}, 1, v{t0}
ds_write_b64 v{t0}, {v(RA, 2)} offset:{L_LS - 256}
s_mov_b64 exec, -1
v_lshrrev_b32 v{t1}, 2, v{cS4}
s_waitcnt lgkmcnt(0)
s_barrier
ds_read_u16 v{t1}, v{t1} offset:{L_CNT}
s_lshl_b32 s{sT}, s{sW}, 3
s_mul_i32 s{sX}, s{sW}, {LSTR // 2}
s_add_u32 s{sX}, s{sX}, {BIAS + 4 * XC}
s_waitcnt lgkmcnt(0)
v_readlane_b32 s{sNT}, v{t1}, s{sT}
s_sub_u32 s{sNT}, s{sNT}, s{sX}
s_lshl_b32 s{sNT}, s{sNT}, 1
s_branch K2_PROCESS
""")

a.raw('.section .rodata,"a"')
for name, nv in (("egnn_bin_kernel", 96), ("egnn_edge_kernel", NVGPR)):
    a.raw(".p2align 6")
    a.raw(f".amdhsa_kernel {name}")
    a.raw(f"  .amdhsa_next_free_vgpr {nv}")
    a.raw("  .amdhsa_next_free_sgpr 102")
    a.raw(f"  .amdhsa_accum_offset {nv}")
    a.raw("  .amdhsa_group_segment_fixed_size 0")
    a.raw("  .amdhsa_kernarg_size 88")
    a.raw("  .amdhsa_user_sgpr_count 2")
    a.raw("  .amdhsa_user_sgpr_kernarg_segment_ptr 1")
    a.raw("  .amdhsa_system_sgpr_workgroup_id_x 1")
    a.raw("  .amdhsa_float_denorm_mode_32 3")
    a.raw(".end_amdhsa_kernel")

probs = check_hazards([l for l in a.lines if not l.startswith(";") and not l.startswith(" ")])
for p in probs:
    print(p, file=sys.stderr)
open(sys.argv[1], "w").write(a.text())
print(f"wrote {sys.argv[1]}: {len(a.lines)} lines, {len(probs)} hazards, K2 LDS {K2_LDS}", file=sys.stderr)
```

```python
import sys
src, dst, kern, idx, mode = sys.argv[1], sys.argv[2], int(sys.argv[3]), int(sys.argv[4]), sys.argv[5]
s = open(src).read()
lines = s.split('\n')
i = [k for k, l in enumerate(lines) if l.startswith('; @launch')]
if 'kernel=' not in lines[i[0]]:
    lines[i[0]] = lines[i[0]].replace('@launch', '@launch kernel=standalone__cheap_equivariant_egnn__graph_kernel')
lines[i[-1] + 1:i[-1] + 1] = ['; @launch kernel=diag_kernel grid=(1,1,1) block=(64,1,1) lds=0']
ST = 10 << 20
base0 = int(sys.argv[6]) if len(sys.argv) > 6 else 0
off = ST + (kern << 19) + idx * 4
diff = mode.startswith('diff')
if diff:
    _, idx2, sh = mode.split(':'); idx2 = int(idx2); sh = int(sh)
body = f"""
.globl diag_kernel
.p2align 8
.type diag_kernel,@function
diag_kernel:
    s_cmp_lg_u32 s2, 0
    s_cbranch_scc1 DG_END
    s_load_dwordx2 s[4:5], s[0:1], 80
    v_lshrrev_b32 v1, 3, v0
    v_and_b32 v2, 7, v0
    v_lshl_add_u32 v1, v1, 4, v2
    v_lshlrev_b32 v1, 6, v1
    v_add_u32 v2, {ST + (base0 << 19)}, v1
    v_add_u32 v3, {off}, v1
    v_mov_b32 v4, -1
    v_mov_b32 v5, 0
    v_mov_b32 v6, -1
    v_mov_b32 v9, 0
    s_mov_b32 s6, 0
    s_waitcnt lgkmcnt(0)
DG_L:
    global_load_dword v7, v2, s[4:5]
    global_load_dword v8, v3, s[4:5]
    {"global_load_dword v10, v3, s[4:5] offset:%d" % (4 * (idx2 - idx) if diff else 0) if diff else ""}
    s_waitcnt vmcnt(0)
    {"v_sub_u32 v8, v8, v10" if diff else ""}
    v_min_u32 v4, v4, v7
    v_max_u32 v5, v5, v8
    v_min_u32 v6, v6, v8
    v_add_u32 v9, v9, v8
    v_add_u32 v2, 8192, v2
    v_add_u32 v3, 8192, v3
    s_add_u32 s6, s6, 1
    s_cmp_lt_u32 s6, 16
    s_cbranch_scc1 DG_L
    s_mov_b32 s6, 0
    s_mov_b32 s7, -1
    s_mov_b32 s8, 0
    s_mov_b32 s9, -1
    s_mov_b32 s10, 0
DG_R:
    s_nop 4
    v_readlane_b32 s11, v4, s6
    v_readlane_b32 s12, v5, s6
    v_readlane_b32 s13, v6, s6
    v_readlane_b32 s14, v9, s6
    s_nop 4
    s_min_u32 s7, s7, s11
    s_max_u32 s8, s8, s12
    s_min_u32 s9, s9, s13
    s_add_u32 s10, s10, s14
    s_add_u32 s6, s6, 1
    s_cmp_lt_u32 s6, 64
    s_cbranch_scc1 DG_R
    s_lshl_b32 s11, s7, 10
    {"" if diff else "s_sub_u32 s10, s10, s11"}
    s_lshr_b32 s10, s10, {10 + (sh if diff else 0)}
    s_sub_u32 s8, s8, s7
    s_sub_u32 s9, s9, s7
    s_mov_b32 s12, {'s8' if mode == 'max' else 's9' if mode == 'min' else 's10' if mode == 'mean' or diff else '0'}
    s_min_u32 s12, s12, 20000
    s_add_u32 s12, s12, 10000
    s_mov_b32 s6, 0
DG_S:
    s_memrealtime s[14:15]
    s_waitcnt lgkmcnt(0)
    s_sub_u32 s14, s14, s7
    s_add_u32 s6, s6, 1
    s_cmp_gt_u32 s6, 1000000
    s_cbranch_scc1 DG_END
    s_cmp_lt_u32 s14, s12
    s_cbranch_scc1 DG_S
DG_END:
    s_endpgm
.section .rodata,"a"
.p2align 6
.amdhsa_kernel diag_kernel
  .amdhsa_next_free_vgpr 16
  .amdhsa_next_free_sgpr 32
  .amdhsa_accum_offset 16
  .amdhsa_group_segment_fixed_size 0
  .amdhsa_kernarg_size 88
  .amdhsa_user_sgpr_count 2
  .amdhsa_user_sgpr_kernarg_segment_ptr 1
  .amdhsa_system_sgpr_workgroup_id_x 1
.end_amdhsa_kernel"""
t = '\n'.join(lines).replace('.section .rodata,"a"', body, 1)
open(dst, 'w').write(t)
```

```python
import sys
from asmlib import Asm, v, s, check_hazards

OPT = dict(a.split("=") for a in sys.argv[2:] if "=" in a)


def opt(k, d):
    return int(OPT.get(k, d))


NAME = "standalone__cheap_equivariant_egnn__graph_kernel"
NLOG2E = 0xBFB8AA3B
NLN2 = 0xBF317218
RSTR = 10240
OFF_OFF = 3 << 20
BP_OFF = 5 << 20
L_CNT = 0
L_FLAG = 32
L_WB = 64
L_LS = 256
LSTR = 4112
L_POS = L_LS + 8 * LSTR + 272
L_EA = (L_POS + 60416 + 2047) // 2048 * 2048
L_BF = L_EA + 16384
L_SP = L_BF + 32768
SPR = 56
L_LUT = L_SP + 8 * 32 * SPR
LDS = L_LUT + 8 * 192
L_HC = L_POS
L_WE = L_EA
L_WH = L_WE + 19456
L_H = L_WH + 16384
L_AP = L_H + 5120
L_DP = L_AP + 5120
L_STG = L_DP + 5120
L_WX = L_STG + 10240
assert L_WX + 1024 <= L_LUT and L_H % 128 == 0
XC, YC = 96, 384
BIAS = 10240 + 128
assert L_POS % 16 == 0 and L_POS + 8192 < 65536

a = Asm()
HEADER = open("standalone__cheap_equivariant_egnn__graph.s.ref").read().split("; @launch")[0]
a.raw(HEADER.rstrip())
a.raw(f"; @launch grid=(256,1,1) block=(512,1,1) lds={LDS}")
a.raw('.amdgcn_target "amdgcn-amd-amdhsa--gfx950"')
a.raw(".text")
a.raw(f".globl {NAME}")
a.raw(".p2align 8")
a.raw(f".type {NAME},@function")
a.label(NAME)


def srd(d, base, nrec, off=0, stride=0):
    if off:
        a(f"s_add_u32 {s(d)}, {s(base)}, {off}")
        a(f"s_addc_u32 {s(d + 1)}, {s(base + 1)}, {stride << 16}")
    else:
        a(f"s_mov_b32 {s(d)}, {s(base)}")
        if stride:
            a(f"s_or_b32 {s(d + 1)}, {s(base + 1)}, {stride << 16}")
        else:
            a(f"s_mov_b32 {s(d + 1)}, {s(base + 1)}")
    a(f"s_mov_b32 {s(d + 2)}, {nrec}")
    a(f"s_mov_b32 {s(d + 3)}, 0x20000")


STAMPS = opt("stamps", 0)
ST_OFF = (10 << 20) + (1 << 19)
vST = 255


def stamp(i, cyc=None):
    if STAMPS:
        a("s_memrealtime s[100:101]")
        a("s_waitcnt lgkmcnt(0)")
        a(f"v_writelane_b32 v{vST}, s100, {i}")
        if cyc is not None:
            a("s_memtime s[100:101]")
            a("s_waitcnt lgkmcnt(0)")
            a(f"v_writelane_b32 v{vST}, s100, {cyc}")


def emit(L):
    for x in L:
        a(x)


sW = 3
sH, sPOS, sEAT, sSRC, sDST, sWE, sWXp, sWH = 4, 6, 8, 10, 12, 14, 16, 18
sOUT, sDBG, sWS = 20, 22, 24
sTAG = 26
rBP, rEA, rPOS, rH, rOUT, rX = 28, 32, 36, 40, 44, 48
sBF = 52
sI1, sI2, sLN2, sRET = 56, 58, 60, 62
sM = 64
sBIN, sN0, sMODE, sNT, sEAd, sG, sNL, sSZ = 84, 85, 86, 87, 88, 89, 90, 91
sT = 92
sX, sEV, sLA, sQ = 10, 11, 12, 13
sR2 = 14
sNB, sRK = 18, 19
sC, sJ, sEND = 48, 49, 50

vL = 1
pS1, pS4, pE, vEArd = 2, 3, 4, 5
vBF = 6
vI = 10
vEi = 18
vTR, vLUTb, vSb, vSaddr, vPc, vKf, vCf = 20, 21, 22, 23, 24, 25, 26
vRec, vPa, vLa, vAs, vBs, vZ, vQ = 27, 28, 29, 30, 31, 32, 33
cS1, cS4, cE, cEA = 34, 35, 36, 37
vE2 = 38
OH = 40
T = 44
EA = 48
P0, P1 = 52, 68
ACC0, ACC1 = 84, 100
M0, M1 = 116, 124
BF0, BF1 = 132, 140
SP = 148
PERM = 156
W4H = 164
cA2, cB2, cMid, cAi, cBi, cAP, cPo, vSZ = 172, 173, 174, 175, 176, 177, 178, 179
WH2 = 180
WX = 212
DD = 228
HR = 234
PR = 240
vOo, vPo, vWarm = 241, 242, 243
OB = 244
W3 = 248
vOA = 250
vL16 = 252
NVGPR = 256
e_, hf_, t0, t1, t2, t3 = BF0, BF0 + 1, BF0 + 2, BF0 + 3, BF0 + 4, BF0 + 5
vJ, vCA, vDT, vDS, vS12 = BF0 + 6, BF0 + 8, BF0 + 9, BF0 + 10, BF0 + 11
vTB = BF0 + 7
vCB = BF0 + 12
vRB = BF0 + 14
ENT = SP
vJA, vRM = SP + 4, SP + 6
GR = M0
REC1 = P0
vJX, vRX, vAX = P0 + 12, P0 + 14, EA
RA = P1
PAIR = ACC0


def init_lists(t):
    a(f"""
    s_mul_i32 s{sT}, s{sW}, {LSTR}
    v_lshl_add_u32 v{t + 4}, v{vL}, 4, s{sT}
    v_mov_b32 v{t}, 0xa2710
    v_mov_b32 v{t + 1}, v{t}
    v_mov_b32 v{t + 2}, v{t}
    v_mov_b32 v{t + 3}, v{t}
    s_lshl_b32 s{sT + 1}, s{sW}, 1
    s_lshr_b32 s{sT}, s{sT}, 1
    s_add_u32 s{sT}, s{sT}, {BIAS + 4 * XC}
    v_mov_b32 v{t + 5}, s{sT + 1}
    v_mov_b32 v{t + 6}, s{sT}
    ds_write_b128 v{t + 4}, {v(t, 4)} offset:{L_LS}
    ds_write_b128 v{t + 4}, {v(t, 4)} offset:{L_LS + 1024}
    ds_write_b128 v{t + 4}, {v(t, 4)} offset:{L_LS + 2048}
    ds_write_b128 v{t + 4}, {v(t, 4)} offset:{L_LS + 3072}
    ds_write_b16 v{t + 5}, v{t + 6} offset:{L_CNT}
    ds_write_b16 v{t + 5}, v{t + 6} offset:{L_CNT + 16}
    ds_write_b32 v{vZ}, v{vZ} offset:{L_FLAG}
    ds_write_b32 v{vZ}, v{vZ} offset:{L_POS - 4}
    """)


D_, S_, A_, R_, B_ = 52, 58, 64, 70, 76
x0 = 84
vT16, vG2, vE4, vE5, vFour, vWB, vOwn, vPF, vPF5, vStg = 100, 101, 102, 103, 104, 105, 106, 107, 108, 109
vNon = 110
stamp(0, 12)
a(f"""
s_cmp_ge_u32 s2, 256
s_cbranch_scc1 K_END
s_load_dwordx16 s[4:19], s[0:1], 0
s_load_dwordx4 s[20:23], s[0:1], 64
s_load_dwordx2 s[24:25], s[0:1], 80
v_lshrrev_b32 v2, 6, v0
v_and_b32 v{vL}, 63, v0
v_readfirstlane_b32 s{sW}, v2
v_mov_b32 v{vZ}, 0
s_mul_i32 s{sT + 2}, s2, 10000
v_lshlrev_b32 v{vT16}, 4, v0
v_add_u32 v{vG2}, s{sT + 2}, v{vT16}
v_pk_mov_b32 {v(x0, 2)}, 0, 0
v_pk_mov_b32 {v(x0 + 2, 2)}, 0, 0
s_add_u32 s{sT + 2}, s{sT + 2}, 8192
v_min_u32 v{x0 + 4}, 451, v0
v_lshl_add_u32 v{x0 + 4}, v{x0 + 4}, 2, s{sT + 2}
ds_write_b128 v{vT16}, {v(x0, 4)} offset:{L_HC}
ds_write_b128 v{vZ}, {v(x0, 4)} offset:{L_WB}
ds_write_b128 v{vZ}, {v(x0, 4)} offset:{L_WB + 16}
s_and_b32 s{sT + 3}, s2, 7
s_lshl_b32 s{sBIN}, s{sT + 3}, 5
s_lshr_b32 s{sT + 7}, s2, 3
s_add_u32 s{sBIN}, s{sBIN}, s{sT + 7}
s_mul_i32 s{sN0}, s{sBIN}, 5000
s_add_u32 s{sN0}, s{sN0}, 127
s_lshr_b32 s{sN0}, s{sN0}, 7
v_lshlrev_b32 v{vL16}, 4, v{vL}
v_xor_b32 v{x0 + 5}, v{vT16}, v0
v_and_b32 v{x0 + 5}, 0x70, v{x0 + 5}
v_lshrrev_b32 v{x0 + 6}, 3, v0
v_lshl_or_b32 v{x0 + 5}, v{x0 + 6}, 7, v{x0 + 5}
v_add_u32 v{x0 + 6}, 0x2000, v{vT16}
s_lshl_b32 s{sT + 4}, s{sW}, 10
s_waitcnt lgkmcnt(0)
global_load_dwordx4 {v(D_, 4)}, v{vG2}, {s(sDST, 2)}
global_load_dword v{D_ + 4}, v{x0 + 4}, {s(sDST, 2)}
global_load_dwordx4 {v(S_, 4)}, v{vG2}, {s(sSRC, 2)}
global_load_dword v{S_ + 4}, v{x0 + 4}, {s(sSRC, 2)}
s_barrier
s_add_u32 m0, s{sT + 4}, {L_WE + 8192}
""")
srd(rH, sH, 1280000)
a(f"""
global_load_lds_dwordx4 v{x0 + 6}, {s(sWE, 2)}
s_cmp_ge_u32 s{sW}, 5
s_cbranch_scc1 K_TOUCH
s_add_u32 m0, s{sT + 4}, {L_H}
s_lshl_b32 s{sT}, s{sN0}, 7
buffer_load_dwordx4 v{x0 + 5}, {s(rH, 4)}, s{sT} offen lds
s_or_b32 s{sT}, s2, s{sW}
s_cmp_lg_u32 s{sT}, 0
s_cbranch_scc1 K_TOUCHED
; launch-unique tag for the hand-off words
s_memrealtime {s(sT, 2)}
s_waitcnt lgkmcnt(0)
s_or_b32 s{sT}, s{sT}, 1
v_mov_b32 v{x0}, s{sT}
v_mov_b32 v{x0 + 1}, s{sT + 1}
s_mov_b64 exec, 1
global_store_dwordx2 v{vZ}, {v(x0, 2)}, {s(sDBG, 2)} sc1
s_mov_b64 exec, -1
s_branch K_TOUCHED
K_TOUCH:
; pull this workgroup's share of pos / w_e / w_h into L2
s_cmp_eq_u32 s{sW}, 6
s_cselect_b32 s{rX}, s{sWE}, s{sPOS}
s_cselect_b32 s{rX + 1}, s{sWE + 1}, s{sPOS + 1}
s_cselect_b32 s{rX + 2}, 18560, s{sT + 2}
s_cmp_eq_u32 s{sW}, 7
s_cselect_b32 s{rX}, s{sWH}, s{rX}
s_cselect_b32 s{rX + 1}, s{sWH + 1}, s{rX + 1}
s_cselect_b32 s{rX + 2}, 16384, s{rX + 2}
s_mov_b32 s{rX + 3}, 0x20000
s_lshl_b32 s{sT}, s{sT + 7}, 11
v_lshlrev_b32 v{x0 + 5}, 7, v{vL}
s_mov_b64 exec, 0xffff
buffer_load_dword v{vPa}, v{x0 + 5}, {s(rX, 4)}, s{sT} offen
s_mov_b64 exec, -1
K_TOUCHED:
""".replace(f"s_cmp_eq_u32 s{sW}, 6\n", f"s_mov_b32 s{sT + 2}, 60000\ns_cmp_eq_u32 s{sW}, 6\n"))
init_lists(x0 + 8)
a(f"""
v_cmp_gt_u32 vcc, 452, v0
v_mov_b32 v{vFour}, 4
v_lshlrev_b32 v{vE4}, 22, v0
v_add_u32 v{vE5}, 0x800, v0
v_lshlrev_b32 v{vE5}, 20, v{vE5}
s_mov_b64 {s(sM, 2)}, vcc
s_lshl_b32 s{sM + 2}, 0xfe, s{sW}
s_and_b32 s{sM + 2}, s{sM + 2}, 0xff
s_mov_b32 s{sM + 3}, 0
s_mov_b32 s{sM + 4}, 429497
s_mov_b32 s{sM + 5}, 0x1fffff
s_mov_b32 s{sM + 6}, 0x100000
s_mov_b32 s{sM + 7}, 0x200000
s_mov_b32 s{sM + 8}, 0x300000
s_movk_i32 s{sM + 9}, 0x1ffc
s_mul_i32 s{sT}, s2, {RSTR}
v_add_u32 v{vG2}, s{sT}, v{vT16}
v_lshlrev_b32 v{vWB}, 2, v{vL}
s_lshl_b32 s{sT}, s{sW}, 2
v_mov_b32 v{vOwn}, s{sT}
s_lshl_b32 s{sT + 6}, s{sT + 3}, 2
s_mul_i32 s{sT}, s2, 80000
v_lshl_add_u32 v{vPF}, v0, 7, s{sT}
s_add_u32 s{sT}, s{sT}, 65536
v_lshl_add_u32 v{vPF5}, v0, 5, s{sT}
v_add_u32 v{vStg}, {L_STG}, v{vT16}
""")
srd(rPOS, sPOS, 60000)
srd(rBP, sWS, 10000, BP_OFF, 128)
srd(rEA, sEAT, 0 if opt("noea", 0) else 640000, 0, 32)
srd(rOUT, sOUT, 1340000)
a(f"""
v_and_b32 v{e_}, 31, v{vL}
v_lshrrev_b32 v{hf_}, 5, v{vL}
v_lshlrev_b32 v{vPc}, 2, v{hf_}
v_bfe_u32 v{t0}, v{vL}, 2, 2
v_lshrrev_b32 v{t3}, 4, v{vL}
v_lshl_or_b32 v{t2}, v{t0}, 3, v{t3}
s_lshl_b32 s{sT}, s{sW}, 5
s_or_b32 s{sT}, s{sT}, s{sT + 3}
v_xor_b32 v{t2}, s{sT}, v{t2}
v_xor_b32 v{t3}, 4, v{t2}
v_and_b32 v{vJ}, 3, v0
v_lshlrev_b32 v{vTB}, 3, v{vJ}
v_and_b32 v{t1}, 16, v{vTB}
v_lshl_or_b32 v{vTB}, v{t0}, 7, v{vTB}
s_lshl_b32 s{sT + 1}, s{sBIN}, 5
s_add_u32 s{sT + 1}, s{sT + 1}, {OFF_OFF}
v_add_u32 v{t1}, s{sT + 1}, v{t1}
v_lshl_add_u32 v{vOA}, v{t2}, 13, v{t1}
v_lshl_add_u32 v{vOA + 1}, v{t3}, 13, v{t1}
s_movk_i32 s{sT}, {RSTR}
v_mad_u32_u24 v{vRB}, v{t2}, s{sT}, s{sT}
v_mad_u32_u24 v{vRB + 1}, v{t3}, s{sT}, s{sT}
v_mul_u32_u24 v{vCB}, 2500, v{t2}
v_mul_u32_u24 v{vCB + 1}, 2500, v{t3}
v_mul_u32_u24 v{vS12}, 12, v{vJ}
v_lshlrev_b32 v{vCA}, 2, v{vJ}
s_mul_i32 s{sT + 1}, s{sW}, {32 * SPR}
s_add_u32 s{sT + 1}, s{sT + 1}, {L_SP}
v_or_b32 v{t0}, v{vPc}, v{t0}
v_mul_u32_u24 v{t0}, {SPR}, v{t0}
v_bfe_u32 v{t1}, v{vL}, 4, 1
v_lshl_or_b32 v{t2}, v{t1}, 2, v{vJ}
v_min_u32 v{t2}, 5, v{t2}
v_lshl_add_u32 v{t0}, v{t2}, 3, v{t0}
v_add_u32 v{vTR}, s{sT + 1}, v{t0}
v_mad_u32_u24 v{t0}, v{e_}, {SPR}, v{vPc}
v_add_u32 v{vSb}, s{sT + 1}, v{t0}
v_mad_u32_u24 v{vSZ}, v{vL}, 28, s{sT + 1}
v_lshlrev_b32 v{t0}, 4, v{t1}
v_mov_b32 v{t3}, 0x3f80
v_lshlrev_b32 v{t0}, v{t0}, v{t3}
v_and_b32 v{t2}, 15, v{vL}
v_lshlrev_b32 v{t2}, 2, v{t2}
v_lshl_or_b32 v{cAP}, v{t1}, 1, v{t2}
v_lshl_or_b32 v{cAP}, v{hf_}, 7, v{cAP}
v_bfe_u32 v{t1}, v{vL}, 3, 1
v_lshl_or_b32 v{t1}, v{t1}, 2, v{vJ}
v_xor_b32 v{t2}, v{vL}, v{vPc}
v_and_b32 v{t2}, 4, v{t2}
v_lshl_or_b32 v{t1}, v{t2}, 1, v{t1}
v_lshlrev_b32 v{vJ}, 4, v{vJ}
v_subrev_u32 v{vJ}, s{sT}, v{vJ}
""")
for r in range(0, 8, 2):
    a(f"v_cmp_eq_u32 vcc, {r}, v{t1}")
    a(f"v_cmp_eq_u32 {s(sT, 2)}, {r + 1}, v{t1}")
    a("s_nop 0")
    a(f"v_cndmask_b32 v{PERM + r}, 0, v{t0}, vcc")
    a(f"v_cndmask_b32 v{PERM + r + 1}, 0, v{t0}, {s(sT, 2)}")
a("s_waitcnt vmcnt(4)")
stamp(1)
for k in range(5):
    a(f"v_mul_u32_u24 v{D_ + k}, s{sM + 4}, v{D_ + k}")
    a(f"v_lshrrev_b32 v{A_ + k}, 19, v{D_ + k}")
    a(f"v_and_b32 v{A_ + k}, s{sM + 9}, v{A_ + k}")
for k in range(5):
    if k == 4:
        a(f"s_mov_b64 exec, {s(sM, 2)}")
    a(f"ds_add_rtn_u32 v{R_ + k}, v{A_ + k}, v{vFour} offset:{L_HC}")
a("s_mov_b64 exec, -1")
for k in range(5):
    a(f"v_and_b32_sdwa v{B_ + k}, 28, v{A_ + k} dst_sel:DWORD src0_sel:DWORD src1_sel:BYTE_1")
PF = opt("pf", 1)
a(f"global_load_dwordx2 {v(vNon, 2)}, v{vZ}, {s(sDBG, 2)} sc1")
if PF:
    for k in range(5):
        a(f"v_cmp_eq_u32 {s(sM + 10 + 2 * k, 2)}, s{sT + 6}, v{B_ + k}")
    a(f"""
    s_or_b64 {s(sM + 10, 2)}, {s(sM + 10, 2)}, {s(sM + 12, 2)}
    s_or_b64 {s(sM + 14, 2)}, {s(sM + 14, 2)}, {s(sM + 16, 2)}
    s_or_b64 exec, {s(sM + 10, 2)}, {s(sM + 14, 2)}
    {"s_mov_b64 exec, -1" if PF == 2 else ""}
    global_load_dword v{vAs}, v{vPF}, {s(sEAT, 2)}
    s_and_b64 exec, {s(sM + 18, 2) if PF == 1 else -1}, {s(sM, 2)}
    global_load_dword v{vBs}, v{vPF5}, {s(sEAT, 2)}
    s_mov_b64 exec, -1
    """)
for k in range(5):
    a(f"""
    v_and_b32 v{x0}, s{sM + 5}, v{D_ + k}
    v_mul_u32_u24 v{x0}, 0x4e2, v{x0}
    v_lshrrev_b32 v{x0}, 29, v{x0}
    v_bfe_u32 v{D_ + k}, v{D_ + k}, 21, 3
    v_lshl_or_b32 v{D_ + k}, v{x0}, 3, v{D_ + k}
    v_lshl_or_b32 v{D_ + k}, v{D_ + k}, 14, v{vE4 if k < 4 else vE5}
    """)
c0 = x0
a(f"""
s_waitcnt lgkmcnt(0)
s_barrier
ds_read_b128 {v(c0, 4)}, v{vT16} offset:{L_HC}
s_waitcnt lgkmcnt(0)
v_add_u32 v{c0 + 4}, v{c0}, v{c0 + 1}
v_add_u32 v{c0 + 5}, v{c0 + 4}, v{c0 + 2}
v_add_u32 v{c0 + 6}, v{c0 + 5}, v{c0 + 3}
v_mov_b32 v{c0 + 7}, v{c0 + 6}
s_waitcnt vmcnt({3 if PF else 1})
s_nop 0
""")
fill = [f"v_or_b32 v{D_}, v{D_}, v{S_}"] + [f"v_or3_b32 v{D_ + k}, v{D_ + k}, v{S_ + k}, s{sM + 5 + k}" for k in (1, 2, 3)] + [f"v_or_b32 v{D_ + 4}, v{D_ + 4}, v{S_ + 4}"]
for n, ctl in enumerate(("row_shr:1 row_mask:0xf", "row_shr:2 row_mask:0xf", "row_shr:4 row_mask:0xf", "row_shr:8 row_mask:0xf",
                         "row_bcast:15 row_mask:0xa", "row_bcast:31 row_mask:0xc")):
    a(f"v_add_u32_dpp v{c0 + 7}, v{c0 + 7}, v{c0 + 7} {ctl} bank_mask:0xf")
    if n < 5:
        a(fill[n])
        a(f"v_add_u32 v{R_ + n}, {L_STG}, v{R_ + n}")
a(f"""
v_sub_u32 v{c0 + 8}, v{c0 + 7}, v{c0 + 6}
v_readlane_b32 s{sT}, v{c0 + 7}, 63
v_add_u32 v{c0 + 9}, v{c0 + 8}, v{c0}
v_add_u32 v{c0 + 10}, v{c0 + 8}, v{c0 + 4}
v_add_u32 v{c0 + 11}, v{c0 + 8}, v{c0 + 5}
v_mov_b32 v{c0 + 6}, s{sT}
ds_write_b128 v{vT16}, {v(c0 + 8, 4)} offset:{L_HC}
s_mov_b64 exec, {s(sM + 2, 2)}
ds_add_u32 v{vWB}, v{c0 + 6} offset:{L_WB}
s_mov_b64 exec, -1
v_lshl_or_b32 v{OH}, v{c0 + 9}, 16, v{c0 + 8}
v_lshl_or_b32 v{OH + 1}, v{c0 + 11}, 16, v{c0 + 10}
s_waitcnt lgkmcnt(0)
s_barrier
""")
for k in range(5):
    a(f"ds_read_b32 v{S_ + k}, v{A_ + k} offset:{L_HC}")
    a(f"ds_read_b32 v{B_ + k}, v{B_ + k} offset:{L_WB}")
a(f"""
ds_read_b32 v{vOwn}, v{vOwn} offset:{L_WB}
s_waitcnt lgkmcnt(0)
""")
for k in range(5):
    a(f"v_add3_u32 v{S_ + k}, v{S_ + k}, v{R_ + k}, v{B_ + k}")
for k in range(5):
    if k == 4:
        a(f"s_mov_b64 exec, {s(sM, 2)}")
    a(f"ds_write_b32 v{S_ + k}, v{D_ + k}")
a(f"""
s_mov_b64 exec, -1
v_add_u32 v{OH + 2}, v{c0 + 7}, v{vOwn}
v_lshl_or_b32 v{vOwn}, v{vOwn}, 16, v{vOwn}
v_add_u32 v{OH}, v{OH}, v{vOwn}
v_add_u32 v{OH + 1}, v{OH + 1}, v{vOwn}
s_lshl_b32 s{sT}, s2, 13
s_add_u32 s{sT}, s{sT}, {OFF_OFF}
v_add_u32 v{T}, s{sT}, v{vT16}
v_add_u32 v{x0}, {8192 - 6144}, v{vG2}
s_waitcnt vmcnt({2 if PF else 0})
v_readfirstlane_b32 s{sTAG}, v{vNon}
v_readfirstlane_b32 s{sTAG + 1}, v{vNon + 1}
s_waitcnt lgkmcnt(0)
s_barrier
ds_read_b128 {v(D_, 4)}, v{vStg}
s_cmp_lt_u32 s{sW}, 6
s_cbranch_scc1 K_ONE
ds_read_b128 {v(S_, 4)}, v{vStg} offset:{8192 - 6144}
s_waitcnt lgkmcnt(0)
global_store_dwordx4 v{x0}, {v(S_, 4)}, {s(sWS, 2)} sc1
K_ONE:
s_waitcnt lgkmcnt(0)
global_store_dwordx4 v{vG2}, {v(D_, 4)}, {s(sWS, 2)} sc1
""")
stamp(2)
HB, WA, G0, G1 = 52, 68, 100, 116
vWr, vHr, vGo = T + 1, EA, T + 2
a(f"""
s_and_b32 s{sT}, s{sW}, 1
s_mul_i32 s{sT}, s{sT}, 20
v_lshrrev_b32 v{t0}, 3, v{e_}
v_and_b32 v{t1}, 3, v{e_}
v_lshl_or_b32 v{t0}, v{t0}, 2, v{t1}
v_bfe_u32 v{t1}, v{e_}, 2, 1
v_lshl_or_b32 v{t0}, v{t0}, 1, v{t1}
v_add_u32 v{t0}, s{sT}, v{t0}
v_lshrrev_b32 v{t1}, 1, v{t0}
v_xor_b32 v{t1}, v{t1}, v{hf_}
v_and_b32 v{t1}, 7, v{t1}
v_lshlrev_b32 v{t1}, 4, v{t1}
v_lshl_or_b32 v{t0}, v{t0}, 7, v{t1}
v_add_u32 v{vHr}, {L_H}, v{t0}
v_xor_b32 v{vHr + 1}, 32, v{vHr}
v_xor_b32 v{vHr + 2}, 64, v{vHr}
v_xor_b32 v{vHr + 3}, 0x60, v{vHr}
s_lshr_b32 s{sT + 1}, s{sW}, 1
s_cmp_eq_u32 s{sT + 1}, 0
s_cselect_b32 s{sT + 2}, 8192, 0
s_cmp_eq_u32 s{sT + 1}, 2
s_cselect_b32 s{sT + 2}, {L_WH - L_WE}, s{sT + 2}
s_cselect_b32 s{sLN2}, 1.0, {NLOG2E:#x}
s_mov_b32 s{sLN2 + 1}, s{sLN2}
s_add_u32 s{sT + 2}, s{sT + 2}, {L_WE}
v_and_b32 v{t1}, 16, v{vL}
v_lshl_or_b32 v{t0}, v{t1}, 1, v{vTB}
v_lshl_or_b32 v{t0}, v{hf_}, 10, v{t0}
v_add_u32 v{vWr}, s{sT + 2}, v{t0}
s_lshl_b32 s{sT}, s{sT}, 7
v_lshl_add_u32 v{vGo}, v{vL}, 2, s{sT}
s_cmp_ge_u32 s{sW}, 2
s_cbranch_scc1 K_BULK
s_call_b64 {s(sRET, 2)}, K_GEMM
""")
srd(rX, sWS, 1280000, BP_OFF)
a(f"s_lshl_b32 s{sT}, s{sN0}, 7")
for r in range(10):
    a(f"buffer_store_dword v{G0 + r}, v{vGo}, {s(rX, 4)}, s{sT} offen offset:{256 * r} sc1")
a("s_branch K_BULKED")
a.label("K_BULK")


def dma_range(tag, r, lds, first, end):
    a(f"""
    s_add_u32 s{sT + 4}, s{sT + 4}, {first}
    s_cmp_ge_u32 s{sT + 4}, {end}
    s_cbranch_scc1 {tag}_E
    {tag}_L:
    s_add_u32 m0, s{sT + 4}, {lds}
    s_nop 0
    buffer_load_dwordx4 v{vL16}, {s(r, 4)}, s{sT + 4} offen lds
    s_add_u32 s{sT + 4}, s{sT + 4}, 6144
    s_cmp_lt_u32 s{sT + 4}, {end}
    s_cbranch_scc1 {tag}_L
    {tag}_E:
    s_sub_u32 s{sT + 4}, s{sT + 4}, {end}
    """)


a(f"s_sub_u32 s{sT + 4}, s{sT + 4}, 2048")
srd(rX, sWE, 18560)
dma_range("K_D1", rX, L_WE, 0, 8192)
dma_range("K_D2", rX, L_WE, 16384, 19456)
srd(rX, sWH, 16384)
dma_range("K_D3", rX, L_WH, 0, 16384)
srd(rX, sWXp, 128)
dma_range("K_D4", rX, L_WX, 0, 1024)
dma_range("K_D5", rPOS, L_POS, 0, 60416)
a.label("K_BULKED")
a(f"""
s_cmp_lg_u32 s{sTAG}, 0
s_cbranch_scc0 K_NONCE
K_NONCED:
s_and_b32 s{sTAG + 1}, s{sTAG + 1}, 0xffff
v_lshl_or_b32 v{OH + 2}, s{sTAG + 1}, 16, v{OH + 2}
v_mov_b32 v{OH + 3}, s{sTAG}
""")
a(f"""
s_lshl_b32 s{sT}, s{sW}, 11
s_add_u32 s{sEAd}, s{sT}, {L_EA}
s_lshl_b32 s{sT}, s{sW}, 9
s_add_u32 s{sT}, s{sT}, {L_STG}
v_lshl_add_u32 v{vDT}, v{vL}, 2, s{sT}
v_and_b32 v{vDS}, -16, v{vDT}
v_lshrrev_b32 v{cAi}, 3, v{vL}
v_lshlrev_b32 v{cS4}, 3, v{cAi}
v_and_b32 v{cBi}, 7, v{vL}
v_lshlrev_b32 v{cA2}, 1, v{cAi}
v_lshlrev_b32 v{cB2}, 1, v{cBi}
v_mul_u32_u24 v{cMid}, {LSTR // 2}, v{cAi}
v_add_u32 v{cMid}, {BIAS + 4 * XC}, v{cMid}
v_lshlrev_b32 v{cS1}, 3, v{e_}
s_sub_u32 s{sRK}, 11, s{sW}
s_cmp_lt_u32 s{sW}, 4
s_cselect_b32 s{sRK}, s{sW}, s{sRK}
s_mov_b32 s{sNB}, s{sN0}
s_mul_i32 s{sT + 7}, s{sT + 7}, 320
s_mul_i32 s{sT}, s{sW}, 40
s_add_u32 s{sT + 7}, s{sT + 7}, s{sT}
v_add_u32 v{vWarm}, s{sT + 7}, v{vL}
v_lshlrev_b32 v{vOo}, 1, v{e_}
v_lshl_or_b32 v{vOo}, v{hf_}, 7, v{vOo}
v_xor_b32 v{t0}, v{vL16}, v{vL}
v_and_b32 v{vI + 1}, 0x70, v{t0}
v_xor_b32 v{vI + 3}, 64, v{vI + 1}
v_mov_b32 v{vI + 5}, v{vI + 1}
v_mov_b32 v{vI + 7}, v{vI + 3}
v_and_b32 v{vEi + 1}, 16, v{t0}
v_mov_b32 v{vE2 + 1}, v{vEi + 1}
v_lshlrev_b32 v{t0}, 2, v{vL}
v_or_b32 v{cE}, 4, v{t0}
s_lshl_b32 s{sT}, s{sW}, 12
s_add_u32 s{sBF}, s{sT}, {L_BF}
s_add_u32 s{sBF + 1}, s{sBF}, 1024
s_add_u32 s{sBF + 2}, s{sBF}, 2048
s_add_u32 s{sBF + 3}, s{sBF}, 3072
v_lshrrev_b32 v{t0}, 1, v{e_}
v_xor_b32 v{t0}, v{t0}, v{hf_}
v_and_b32 v{t0}, 7, v{t0}
v_lshlrev_b32 v{t0}, 4, v{t0}
v_lshl_or_b32 v{t0}, v{e_}, 7, v{t0}
v_add_u32 v{vBF}, s{sBF}, v{t0}
v_xor_b32 v{vBF + 1}, 32, v{vBF}
v_xor_b32 v{vBF + 2}, 64, v{vBF}
v_xor_b32 v{vBF + 3}, 0x60, v{vBF}
v_xor_b32 v{t0}, v{cAi}, v{hf_}
v_and_b32 v{t0}, 1, v{t0}
v_lshlrev_b32 v{t0}, 4, v{t0}
v_lshl_or_b32 v{cEA}, v{e_}, 5, v{t0}
v_lshrrev_b32 v{t0}, 2, v{e_}
v_sub_u32 v{cPo}, v{e_}, v{t0}
v_cvt_f32_u32 v{vKf}, v{hf_}
v_add_f32 v{vCf}, -1.0, v{vKf}
v_mul_u32_u24 v{vLUTb}, 96, v{hf_}
s_movk_i32 s{sI1}, {0 if opt("bench", 0) else 256}
s_mov_b32 s{sI1 + 1}, s{sI1}
s_mov_b32 s{sI2}, s{sI1}
s_mov_b32 s{sNL}, {NLOG2E:#x}
s_waitcnt vmcnt(0)
s_barrier
global_store_dwordx4 v{T}, {v(OH, 4)}, {s(sWS, 2)} sc1
""")
stamp(3)
a(f"""
s_sub_u32 s{sT}, s{sW}, 2
s_cmp_ge_u32 s{sT}, 4
s_cbranch_scc1 K_NOTASK
s_call_b64 {s(sRET, 2)}, K_GEMM
s_lshr_b32 s{sT}, s{sW}, 2
s_mul_i32 s{sT}, s{sT}, 5120
s_add_u32 s{sT}, s{sT}, {L_AP}
v_add_u32 v{vGo}, s{sT}, v{vGo}
""")
for r in range(0, 10, 2):
    a(f"ds_write2st64_b32 v{vGo}, v{G0 + r}, v{G0 + r + 1} offset0:{r} offset1:{r + 1}")
a.label("K_NOTASK")
WR = P0
LU = P0 + 8
a(f"""
v_and_b32 v{t1}, 16, v{vL}
v_lshl_or_b32 v{t0}, v{t1}, 2, v{vTB}
v_lshl_or_b32 v{t0}, v{hf_}, 10, v{t0}
v_add_u32 v{t0}, {L_WE + 129 * 128}, v{t0}
v_and_b32 v{t2}, 15, v{vL}
v_lshlrev_b32 v{t2}, 1, v{t2}
v_lshl_or_b32 v{t2}, v{t1}, 2, v{t2}
v_add_u32 v{t2}, {L_WE + 128 * 128}, v{t2}
v_lshl_or_b32 v{t1}, v{t1}, 1, v{vTB}
v_lshl_or_b32 v{t1}, v{hf_}, 9, v{t1}
v_add_u32 v{t1}, {L_WH + 8192}, v{t1}
v_lshlrev_b32 v{t3}, 3, v{hf_}
v_add_u32 v{t3}, {L_WX}, v{t3}
s_lshl_b32 s{sT}, s{sBIN}, 3
s_add_u32 s{sT}, s{sT}, s{sW}
s_mul_i32 s{sT}, s{sT}, 625
s_add_u32 s{sT}, s{sT}, 127
s_lshr_b32 s{sT}, s{sT}, 7
v_add_u32 v{LU + 4}, s{sT}, v{e_}
v_mad_u32_u24 v{LU + 4}, v{LU + 4}, 6, v{vPc}
""")
for b in range(2):
    for u in range(2):
        a(f"ds_read_b64_tr_b16 {v(WR + 4 * b + 2 * u, 2)}, v{t0} offset:{u * 512 + b * 32}")
a(f"""
ds_read_u16 v{LU + 2}, v{LU + 4} offset:{L_POS - 2}
ds_read_u16 v{LU + 3}, v{LU + 4} offset:{L_POS}
ds_read_u16 v{W3}, v{t2}
ds_read_u16 v{W3 + 1}, v{t2} offset:32
""")
for st in range(4):
    b, t = st >> 1, st & 1
    a(f"ds_read2_b64 {v(WX + 4 * st, 4)}, v{t3} offset0:{4 * b + 8 * t} offset1:{4 * b + 8 * t + 2}")
a(f"""
v_xor_b32 v{t0}, v{e_}, v{hf_}
v_cmp_eq_u32 vcc, 0, v{t0}
v_cmp_eq_u32 {s(sT, 2)}, 2, v{t0}
v_cmp_eq_u32 {s(sT + 2, 2)}, 4, v{t0}
v_mov_b32 v{t3}, 0x3f80
v_cndmask_b32 v{LU}, 0, v{t3}, vcc
v_cndmask_b32 v{LU}, v{LU}, 1.0, {s(sT, 2)}
v_cndmask_b32 v{LU + 1}, 0, 1.0, {s(sT + 2, 2)}
v_cmp_gt_u32 vcc, 6, v{e_}
s_mul_i32 s{sT}, s{sW}, 192
s_add_u32 s{sT}, s{sT}, {L_LUT}
v_lshl_add_u32 v{LU + 4}, v{e_}, 4, v{vLUTb}
v_add_u32 v{LU + 4}, s{sT}, v{LU + 4}
s_waitcnt lgkmcnt(0)
""")
n = 0
for st in range(4):
    b, t = st >> 1, st & 1
    for fb in range(2):
        for u in range(2):
            if n == 14:
                break
            a(f"ds_read_b64_tr_b16 {v(WH2 + 8 * st + 4 * fb + 2 * u, 2)}, v{t1} offset:{(16 * b + 32 * t + 8 * u) * 128 + 64 * fb}")
            n += 1
for i in range(8):
    a(f"v_lshlrev_b32 v{t2}, 16, v{WR + i}")
    a(f"v_and_b32 v{t3}, 0xffff0000, v{WR + i}")
    a(f"v_mul_f32 v{t2}, s{sNL}, v{t2}")
    a(f"v_mul_f32 v{t3}, s{sNL}, v{t3}")
    a(f"v_cvt_pk_bf16_f32 v{W4H + i}, v{t2}, v{t3}")
a(f"""
v_lshlrev_b32 v{LU + 2}, 16, v{LU + 2}
v_lshlrev_b32 v{LU + 3}, 16, v{LU + 3}
v_fma_f32 v{LU + 2}, v{LU + 2}, v{vKf}, -v{vCf}
ds_read_b64_tr_b16 {v(WH2 + 28, 2)}, v{t1} offset:{48 * 128 + 64}
ds_read_b64_tr_b16 {v(WH2 + 30, 2)}, v{t1} offset:{56 * 128 + 64}
s_mov_b64 exec, vcc
ds_write_b128 v{LU + 4}, {v(LU, 4)}
s_mov_b64 exec, -1
v_and_b32 v{t0}, 1, v{vL}
v_cmp_eq_u32 {s(sT + 4, 2)}, 1, v{t0}
v_mov_b32 v{t3}, s{sTAG + 1}
s_mov_b32 s{sLN2}, {NLN2:#x}
s_mov_b32 s{sLN2 + 1}, s{sLN2}
s_mov_b32 s{sT + 6}, 0xe3fff
s_mov_b32 s{sT + 7}, 0
""")
stamp(4)

a(f"""
K_POLL:
global_load_dwordx4 {v(GR, 4)}, v{vOA}, {s(sWS, 2)} sc1
global_load_dwordx4 {v(GR + 4, 4)}, v{vOA + 1}, {s(sWS, 2)} sc1
s_add_u32 s{sT + 7}, s{sT + 7}, 1
s_waitcnt vmcnt(0)
v_cmp_ne_u32 vcc, s{sTAG}, v{GR + 3}
v_cmp_ne_u32 {s(sT, 2)}, s{sTAG}, v{GR + 7}
v_cmp_ne_u32_sdwa {s(sT + 2, 2)}, v{t3}, v{GR + 2} src0_sel:DWORD src1_sel:WORD_1
v_cmp_ne_u32_sdwa {s(sM, 2)}, v{t3}, v{GR + 6} src0_sel:DWORD src1_sel:WORD_1
v_cndmask_b32 v{ENT}, v{GR}, v{GR + 1}, {s(sT + 4, 2)}
v_cndmask_b32 v{ENT + 1}, v{GR + 1}, v{GR + 2}, {s(sT + 4, 2)}
v_cndmask_b32 v{ENT + 2}, v{GR + 4}, v{GR + 5}, {s(sT + 4, 2)}
v_cndmask_b32 v{ENT + 3}, v{GR + 5}, v{GR + 6}, {s(sT + 4, 2)}
s_or_b64 vcc, vcc, {s(sT, 2)}
s_or_b64 {s(sT + 2, 2)}, {s(sT + 2, 2)}, {s(sM, 2)}
s_or_b64 vcc, vcc, {s(sT + 2, 2)}
s_cbranch_scc1 K_REPOLL
""")
stamp(5)
for i in range(2):
    a(f"v_mov_b32_dpp v{vJA + i}, v{ENT + 2 * i} quad_perm:[0,0,0,0] row_mask:0xf bank_mask:0xf")
    a(f"v_mov_b32_dpp v{vRM + i}, v{ENT + 2 * i + 1} quad_perm:[3,3,3,3] row_mask:0xf bank_mask:0xf")
for i in range(2):
    a(f"v_add_u32_sdwa v{vJA + i}, v{vJA + i}, v{vJ} dst_sel:DWORD src0_sel:WORD_0 src1_sel:DWORD")
    a(f"v_alignbit_b32 v{ENT + 2 * i + 1}, v{ENT + 2 * i + 1}, v{ENT + 2 * i}, 16")
for i in range(2):
    a(f"v_add_u32 v{vRB + i}, v{vRB + i}, v{vJA + i}")
    a(f"v_pk_sub_u16 v{t0 + i}, v{ENT + 2 * i + 1}, v{ENT + 2 * i}")
    a(f"v_sub_u32 v{vAX + i}, v{vRB + i}, v{vS12}")
a(f"""
global_load_dwordx4 {v(REC1, 4)}, v{vRB}, {s(sWS, 2)} sc1
global_load_dwordx4 {v(REC1 + 4, 4)}, v{vRB + 1}, {s(sWS, 2)} sc1
global_load_dword v{REC1 + 8}, v{vAX}, {s(sWS, 2)} offset:64 sc1
global_load_dword v{REC1 + 9}, v{vAX + 1}, {s(sWS, 2)} offset:64 sc1
s_mov_b64 exec, 0xffff
ds_sub_rtn_u32 v{t2}, v{vCA}, v{t0} offset:{L_CNT + 16}
v_mov_b32 v{ENT}, v{ENT + 1}
s_not_b64 exec, exec
ds_add_rtn_u32 v{t2}, v{vCA}, v{t0} offset:{L_CNT}
s_mov_b64 exec, -1
ds_add_rtn_u32 v{t3}, v{vCA}, v{t1} offset:{L_CNT}
v_sub_u32_sdwa v{vRM}, v{vRM}, v{vJA} dst_sel:DWORD src0_sel:WORD_0 src1_sel:DWORD
v_sub_u32_sdwa v{vRM + 1}, v{vRM + 1}, v{vJA + 1} dst_sel:DWORD src0_sel:WORD_0 src1_sel:DWORD
s_movk_i32 s{sT}, {RSTR}
v_subrev_u32 v{vRM}, s{sT}, v{vRM}
v_subrev_u32 v{vRM + 1}, s{sT}, v{vRM + 1}
v_max_i32 v{t0}, v{vRM}, v{vRM + 1}
v_cmp_lt_i32 vcc, 0x50, v{t0}
s_mov_b64 {s(sR2, 2)}, vcc
s_cbranch_vccnz K_LONG
K_LONG_BACK:
""")
for i in range(2):
    for k in range(4):
        a(f"v_cmp_lt_i32 {s(sM + 2 * (4 * i + k), 2)}, {4 * k}, v{vRM + i}")
    a(f"v_sub_u32 v{vJX + i}, v{vJA + i}, v{vS12}")
    a(f"v_add3_u32 v{vRX + i}, v{vRM + i}, v{vS12}, -16")
a(f"""
v_cmp_lt_i32 {s(sM + 16, 2)}, 48, v{vRX}
v_cmp_lt_i32 {s(sM + 18, 2)}, 48, v{vRX + 1}
s_waitcnt lgkmcnt(0)
s_barrier
ds_read_u16 v{OH}, v{cA2} offset:{L_CNT}
ds_read_u16 v{OH + 1}, v{cA2} offset:{L_CNT + 16}
ds_read_u16 v{OH + 2}, v{cB2} offset:{L_CNT}
ds_read_u16 v{OH + 3}, v{cB2} offset:{L_CNT + 16}
ds_read_b32 v{t1}, v{vZ} offset:{L_FLAG}
s_mov_b32 exec_hi, 0xff
buffer_load_dword v{vQ}, v{vWarm if opt("warm", 1) else vZ}, {s(rBP, 4)}, 0 idxen sc1
s_mov_b32 exec_hi, -1
v_pk_sub_u16 v{t2}, v{t2}, v{ENT}
v_pk_sub_u16 v{t3}, v{t3}, v{ENT + 2}
ds_write2st64_b32 v{vDT}, v{t2}, v{t3} offset1:1
s_waitcnt lgkmcnt(1)
v_sub_u32 v{t2}, v{OH}, v{OH + 1}
v_sub_u32 v{t3}, v{OH + 2}, v{OH + 3}
v_lshl_add_u32 v{t2}, v{t2}, 1, v{cAi}
v_lshl_add_u32 v{t3}, v{t3}, 1, v{cBi}
v_cmp_gt_u32 vcc, v{t3}, v{t2}
v_sub_u32 v{OH}, v{OH}, v{cMid}
v_sub_u32 v{OH + 2}, v{cMid}, v{OH + 1}
v_lshrrev_b64 {v(ENT, 2)}, v{cS4}, vcc
v_lshl_add_u32 v{OH}, v{t1}, 20, v{OH}
v_lshlrev_b32 v{OH + 2}, 2, v{OH + 2}
v_max_u32 v{OH}, v{OH}, v{OH + 2}
v_cmp_lt_u32 vcc, {4 * YC}, v{OH}
v_and_b32 v{ENT}, 0xff, v{ENT}
v_bcnt_u32_b32 v{ENT}, v{ENT}, 0
s_cmp_lg_u64 vcc, 0
v_cmp_eq_u32 vcc, s{sRK}, v{ENT}
s_cselect_b32 s{sMODE}, 1, 0
s_ff1_i32_b64 s{sG}, vcc
s_lshl_b32 s{sT}, s{sW}, 3
s_cmp_lg_u32 s{sMODE}, 0
s_cselect_b32 s{sG}, s{sT}, s{sG}
v_readlane_b32 s{sNT}, v{t2}, s{sG}
v_readlane_b32 s{sX}, v{OH + 1}, s{sG}
s_lshr_b32 s{sG}, s{sG}, 3
s_lshl_b32 s{sT}, s{sBIN}, 3
s_add_u32 s{sT}, s{sT}, s{sG}
s_mul_i32 s{sSZ}, s{sT}, 625
s_add_u32 s{sN0}, s{sSZ}, 127
s_lshr_b32 s{sN0}, s{sN0}, 7
s_sub_u32 s{sT}, s{sN0}, s{sNB}
s_lshl_b32 s{sT}, s{sT}, 7
s_add_u32 s{sT}, s{sT}, {L_AP}
v_add_u32 v{t0}, s{sT}, v{cAP}
v_lshl_add_u32 v{t1}, v{vL}, 2, s{sT}
""")
assert YC == 4 * XC
for fb in range(2):
    for j in range(3):
        a(f"ds_read_u16 v{M0 + 3 * fb + j}, v{t0} offset:{64 * fb + 256 * j}")
for j in range(3):
    a(f"ds_read_b32 v{DD + j}, v{t1} offset:{5120 + 256 * j}")
a(f"""
s_cmp_lg_u32 s{sMODE}, 0
s_cbranch_scc1 K_SLOW_INIT
s_waitcnt vmcnt(1)
""")
stamp(6)


def scatter(recs, sets, ks, masks):
    n = len(recs)
    for i in range(n):
        a(f"v_lshrrev_b32 v{RA + i}, 13, v{recs[i]}")
        a(f"v_and_or_b32 v{RA + i}, v{RA + i}, 14, v{vDS}")
    for i in range(n):
        a(f"ds_read_u16 v{RA + i}, v{RA + i} offset:{256 * sets[i]}")
    for i in range(n):
        a(f"v_lshrrev_b32 v{PAIR + 2 * i + 1}, 20, v{recs[i]}")
        a(f"v_add_u32 v{PAIR + 2 * i + 1}, v{vCB + sets[i]}, v{PAIR + 2 * i + 1}")
        a(f"v_and_b32 v{PAIR + 2 * i}, s{sT + 6}, v{recs[i]}")
    a("s_waitcnt lgkmcnt(0)")
    for i in range(n):
        a(f"v_add_lshl_u32 v{RA + i}, v{RA + i}, v{(vJA if ks[i] < 16 else vJX) + sets[i]}, 1")
    for i in range(n):
        a(f"s_mov_b64 exec, {masks[i]}")
        a(f"ds_write_b64 v{RA + i}, {v(PAIR + 2 * i, 2)} offset:{L_LS - 256 + 8 * ks[i]}")
    a("s_mov_b64 exec, -1")


scatter([REC1 + i for i in range(10)], [0, 0, 0, 0, 1, 1, 1, 1, 0, 1], [0, 1, 2, 3, 0, 1, 2, 3, 16, 16], [s(sM + 2 * i, 2) for i in range(10)])
a(f"""
s_cmp_lg_u64 {s(sR2, 2)}, 0
s_cbranch_scc1 K_R2
K_PROCESS:
s_sub_u32 s{sT + 1}, s{sX}, {BIAS}
s_lshl_b32 s{sT + 1}, s{sT + 1}, 1
v_add_u32 v{pS4}, s{sT + 1}, v{cS4}
v_add_u32 v{pE}, s{sT + 1}, v{cE}
v_add_u32 v{pS1}, s{sT + 1}, v{cS1}
s_waitcnt lgkmcnt(0)
s_barrier
""")
stamp(7)
idx_rd = lambda off: [f"ds_read_u16 v{vI + 2 * i}, v{pS4} offset:{L_LS + off + 64 * i}" for i in range(4)]
a(f"ds_read_b32 v{vEi}, v{pE} offset:{L_LS}")
emit(idx_rd(0))
a(f"""
ds_read_b32 v{vRec}, v{pS1} offset:{L_LS}
ds_write2_b32 v{vSZ}, v{vZ}, v{vZ} offset0:0 offset1:1
ds_write2_b32 v{vSZ}, v{vZ}, v{vZ} offset0:2 offset1:3
ds_write2_b32 v{vSZ}, v{vZ}, v{vZ} offset0:4 offset1:5
ds_write_b32 v{vSZ}, v{vZ} offset:24
s_setprio 3
""")
EAPOL = OPT.get("eapol", "")


def dma_bp(i):
    return [f"s_mov_b32 m0, s{sBF + i}", "s_nop 0", f"buffer_load_dwordx4 {v(vI + 2 * i, 2)}, {s(rBP, 4)}, 0 idxen offen sc1 lds"]


def dma_ea(reg):
    return [f"s_mov_b32 m0, s{sEAd}", f"s_xor_b32 s{sEAd}, s{sEAd}, 1024", f"buffer_load_dwordx4 {v(reg, 2)}, {s(rEA, 4)}, 0 idxen offen {EAPOL} lds"]


prep_addr = [f"v_mad_u32_u16 v{vPa}, v{vRec}, 6, v{vPc}", f"v_mad_u32_u16 v{vLa}, v{vRec}, 8, v{vLUTb} op_sel:[1,0,0,0]"]
prep_rd = [f"ds_read_u16_d16_hi v{vAs}, v{vPa} offset:{L_POS - 2}", f"ds_read_u16_d16_hi v{vBs}, v{vPa} offset:{L_POS}", f"ds_read_b128 {v(OH, 4)}, v{vLa}"]
prep_sa = f"v_mad_u32_u16 v{vSaddr}, v{vRec}, 4, v{vSb} op_sel:[1,0,0,0]"
prep_v = [f"v_fma_f32 v{OH + 2}, -v{vAs}, v{vKf}, v{OH + 2}", f"v_sub_f32 v{OH + 3}, v{OH + 3}, v{vBs}",
          f"v_cvt_pk_bf16_f32 v{vQ}, v{OH + 2}, v{OH + 3}",
          f"v_fma_f32 v{OH + 2}, v{OH + 2}, v{OH + 2}, v{vCf}", f"v_fmac_f32 v{OH + 2}, v{OH + 3}, v{OH + 3}", f"v_mul_f32 v{OH + 2}, s{sNL}, v{OH + 2}",
          f"v_cvt_pk_bf16_f32 v{OH + 1}, v{OH + 1}, v{OH + 2}"]
s_wr = f"ds_write_b32 v{vSaddr}, v{vQ}"
s_clr = f"ds_write_b32 v{vSaddr}, v{vZ}"
rd_frag = [f"ds_read_b128 {v(EA, 4)}, v{vEArd}", f"ds_read_b128 {v(BF0, 4)}, v{vBF}", f"ds_read_b128 {v(BF0 + 4, 4)}, v{vBF + 1}",
           f"ds_read_b128 {v(BF1, 4)}, v{vBF + 2}", f"ds_read_b128 {v(BF1 + 4, 4)}, v{vBF + 3}"]
rd_tr = [f"ds_read_b64_tr_b16 {v(SP + 2 * q, 2)}, v{vTR} offset:{q * 8 * SPR}" for q in range(4)]


def mf(d, x, y, c=None, n=4):
    op = "v_mfma_f32_32x32x16_bf16" if n == 4 else "v_mfma_f32_32x32x8_bf16"
    return f"{op} {v(d, 16)}, {v(x, n)}, {v(y, n)}, {'0' if c == 0 else v(d, 16)}"


a(f"""
v_add_u32 v{vEArd}, s{sEAd}, v{cEA}
s_waitcnt lgkmcnt(5)
""")
emit(dma_ea(vEi))
for i in range(4):
    emit(dma_bp(i))
a(f"""
s_setprio 0
s_cmp_eq_u32 s{sMODE}, 2
s_cbranch_scc1 K_NOCONST
s_mul_i32 s{sT}, s{sG}, 192
s_add_u32 s{sT}, s{sT}, {L_LUT}
v_add_u32 v{vLUTb}, s{sT}, v{vLUTb}
s_lshl_b32 s{sT}, s{sN0}, 7
v_add_u32 v{vOo}, s{sT}, v{vOo}
s_mul_i32 s{sT}, s{sN0}, 3
s_sub_u32 s{sT}, s{sT}, 1
v_add_lshl_u32 v{vPo}, v{cPo}, s{sT}, 1
s_add_u32 s{sSZ}, s{sSZ}, {127 + 625}
s_lshr_b32 s{sSZ}, s{sSZ}, 7
s_sub_u32 s{sSZ}, s{sSZ}, s{sN0}
v_lshl_or_b32 v{OB}, v{M0 + 1}, 16, v{M0}
v_lshl_or_b32 v{OB + 1}, v{W3}, 16, v{M0 + 2}
v_lshl_or_b32 v{OB + 2}, v{M0 + 4}, 16, v{M0 + 3}
v_lshl_or_b32 v{OB + 3}, v{W3 + 1}, 16, v{M0 + 5}
v_pk_mov_b32 {v(M0 + 6, 2)}, 0, 0
""")
for r in range(16):
    a(f"v_pk_mov_b32 {v(ACC0 + 2 * r, 2)}, 0, 0")
a(f"""
K_NOCONST:
s_waitcnt lgkmcnt(4)
""")
emit(prep_addr + [prep_sa])
a(f"""
v_mov_b32 v{vAs}, 0
v_mov_b32 v{vBs}, 0
""")
emit(prep_rd)
emit(idx_rd(256))
a(f"""
ds_read_b32 v{vEi}, v{pE} offset:{L_LS + 256}
ds_read_b32 v{vE2}, v{pE} offset:{L_LS + 512}
s_add_u32 s{sNT}, s{sNT}, 248
s_bfe_u32 s{sQ}, s{sNT}, 0x20006
s_lshr_b32 s{sNT}, s{sNT}, 8
s_mov_b32 s{sI2 + 1}, -1024
""")
for r in range(4):
    a(f"v_pk_mov_b32 {v(SP + 2 * r, 2)}, 0, 0")
    a(f"v_pk_mov_b32 {v(M1 + 2 * r, 2)}, 0, 0")
for r in range(2):
    a(f"v_pk_mov_b32 {v(T + 2 * r, 2)}, 0, 0")
EARLY1 = opt("early1", 1)
a("s_waitcnt lgkmcnt(0)")
if EARLY1:
    emit(dma_ea(vEi))
a(f"s_waitcnt vmcnt({EARLY1})")
emit(rd_frag)
emit(prep_v + [s_wr])
a(f"""
v_add_u32 v{vEArd}, 0x400, v{vEArd}
s_waitcnt lgkmcnt(5)
""")
a(mf(P0, EA, W4H, 0))
a("s_waitcnt lgkmcnt(1)")
a(mf(P0, BF0, PERM))
a(mf(P0, BF0 + 4, PERM + 4))
for i in range(4):
    emit(dma_bp(i))
a(mf(P0, OH, OB, n=2))
if not EARLY1:
    emit(dma_ea(vEi))
if opt("bench", 0):
    a(f"s_mov_b32 s{sNT}, {opt('bench', 0)}")
LATE_AT = opt("late", 4)
PRIO = opt("prio", 1)
stamp(8, 13)
if STAMPS:
    a(f"v_writelane_b32 v{vST}, s{sNT}, 15")
if PRIO:
    a("s_setprio 3")
a(f"""
s_mov_b32 s{sEV}, s{sNT}
s_mov_b32 s{sLA}, 1
s_cmp_ge_u32 s{sNT}, {LATE_AT + 1}
s_cbranch_scc1 K_LOOP
s_call_b64 {s(sRET, 2)}, K_LATE
s_cmp_eq_u32 s{sNT}, 0
s_cbranch_scc1 K_DRAINED
s_cmp_eq_u32 s{sNT}, 1
s_cbranch_scc1 K_TAIL
""")


def silu_slots(P, M, Mprev):
    sl = []
    for k in range(4):
        mdst = (Mprev + 6) if k == 0 else (M + 2 * (k - 1))
        pre = [f"v_cvt_pk_bf16_f32 v{mdst}, v{T}, v{T + 1}", f"v_cvt_pk_bf16_f32 v{mdst + 1}, v{T + 2}, v{T + 3}"]
        tr = [f"v_exp_f32 v{T + i}, v{P + 4 * k + i}" for i in range(4)]
        pk = [f"v_pk_add_f32 {v(T + 2 * i, 2)}, {v(T + 2 * i, 2)}, 1.0 op_sel_hi:[1,0]" for i in range(2)]
        sl.append(pre + tr + pk)
        tr = [f"v_rcp_f32 v{T + i}, v{T + i}" for i in range(4)]
        pk = [f"v_pk_mul_f32 {v(T + 2 * i, 2)}, {v(T + 2 * i, 2)}, {v(P + 4 * k + 2 * i, 2)}" for i in range(2)]
        sl.append(tr + pk)
    return sl


def emit_slot(before, mfma, after, slot):
    flt = lambda L: [x for x in L if not (opt("nodma", 0) and x.startswith("buffer_")) and not (opt("nods", 0) and x.startswith("ds_"))
                     and not (opt("novx", 0) and x.startswith("v_")) and not any(x.startswith(y) for y in OPT.get("drop", "@").split(","))]
    emit(flt(before))
    if mfma:
        a(mfma)
    emit(flt(after))
    emit(slot)


a.raw(".p2align 3")
a.label("K_LOOP")
SA = silu_slots(P0, M0, M1)
SB = silu_slots(P1, M1, M0)
GR1 = [f"ds_read_b32 v{vRec}, v{pS1} offset:{L_LS + 256}"] + idx_rd(512) + [f"ds_read_b32 v{vEi}, v{pE} offset:{L_LS + 768}"]
emit_slot([], mf(P1, BF1, PERM, 0), GR1, SA[0])
emit_slot([], mf(P1, BF1 + 4, PERM + 4), [f"v_lshl_add_u64 {v(pS1, 2)}, {v(pS1, 2)}, 0, {s(sI1, 2)}"], SA[1])
emit_slot([], mf(P1, EA, W4H + 4), [], SA[2])
emit_slot([], None, ["s_waitcnt lgkmcnt(0)"] + prep_addr, SA[3])
emit_slot([], mf(ACC1, M1, SP), [f"s_cmp_eq_u32 s{sNT}, s{sEV}", "s_cbranch_scc1 K_EVENT", "K_EVENT_BACK:"], SA[4])
emit_slot([], mf(P1, OH, OB + 2, n=2), [], SA[5])
emit_slot([], mf(ACC1, M1 + 4, SP + 4), ["s_waitcnt vmcnt(1)"] + rd_frag[:1] + prep_rd + rd_frag[1:] + rd_tr + [s_clr], SA[6])
emit_slot([], None, [prep_sa, f"v_lshl_add_u64 {v(pE, 2)}, {v(pE, 2)}, 0, {s(sI2, 2)}"], SA[7])
emit_slot([], None, [f"s_xor_b32 s{sI2 + 1}, s{sI2 + 1}, 0xfffff800", f"s_cmp_eq_u32 s{sNT}, s{sLA}", "s_cbranch_scc1 K_LATE_IN", "K_LATE_BACK:"], SB[0])
emit_slot(["s_waitcnt lgkmcnt(9)"], mf(P0, EA, W4H, 0), prep_v[:3], SB[1])
emit_slot([], None, ["s_waitcnt lgkmcnt(5)", s_wr] + dma_bp(0) + dma_bp(1) + dma_bp(2) + dma_bp(3) + dma_ea(vEi), SB[2])
emit_slot([], mf(P0, BF0, PERM), prep_v[3:], SB[3])
emit_slot([], mf(P0, BF0 + 4, PERM + 4), [], SB[4])
emit_slot(["s_waitcnt lgkmcnt(2)"], mf(ACC0, M0, SP), [], SB[5])
emit_slot([], mf(P0, OH, OB, n=2), [], SB[6])
emit_slot([f"s_sub_u32 s{sNT}, s{sNT}, 1", f"s_cmp_lg_u32 s{sNT}, 1"], mf(ACC0, M0 + 4, SP + 4), [], SB[7])
a("s_cbranch_scc1 K_LOOP")

a.label("K_TAIL")
if PRIO:
    a("s_setprio 0")


def tail_quad(tag, P, M, k, m1, m2):
    ex = [f"v_exp_f32 v{T + i}, v{P + 4 * k + i}" for i in range(4)] + [f"v_pk_add_f32 {v(T + 2 * i, 2)}, {v(T + 2 * i, 2)}, 1.0 op_sel_hi:[1,0]" for i in range(2)]
    rc = [f"v_rcp_f32 v{T + i}, v{T + i}" for i in range(4)] + [f"v_pk_mul_f32 {v(T + 2 * i, 2)}, {v(T + 2 * i, 2)}, {v(P + 4 * k + 2 * i, 2)}" for i in range(2)]
    rc += [f"v_cvt_pk_bf16_f32 v{M + 2 * k}, v{T}, v{T + 1}", f"v_cvt_pk_bf16_f32 v{M + 2 * k + 1}, v{T + 2}, v{T + 3}"]
    if k:
        a(f"s_cmp_lt_u32 s{sQ}, {k}")
    emit(m1)
    if k and m2:
        a(f"s_cbranch_scc1 {tag}{k}a")
    elif k:
        a(f"s_cbranch_scc1 {tag}{k}b")
    emit(ex)
    if k and m2:
        a.label(f"{tag}{k}a")
    emit(m2)
    if k and m2:
        a(f"s_cbranch_scc1 {tag}{k}b")
    emit(rc)
    if k:
        a.label(f"{tag}{k}b")


a(mf(P1, OH, OB + 2, 0, n=2))
a(f"""
v_cvt_pk_bf16_f32 v{M1 + 6}, v{T}, v{T + 1}
v_cvt_pk_bf16_f32 v{M1 + 7}, v{T + 2}, v{T + 3}
""")
tail_quad("K_TA", P0, M0, 0, ["s_nop 1"], [mf(ACC1, M1, SP)])
tail_quad("K_TA", P0, M0, 1, [mf(ACC1, M1 + 4, SP + 4)] + rd_tr, [mf(P1, BF1, PERM)])
tail_quad("K_TA", P0, M0, 2, [mf(P1, BF1 + 4, PERM + 4)], [mf(P1, EA, W4H + 4)])
tail_quad("K_TA", P0, M0, 3, [], [])
a("s_waitcnt lgkmcnt(0)")
a(mf(ACC0, M0, SP))
a("s_nop 6")
tail_quad("K_TB", P1, M1, 0, [], [mf(ACC0, M0 + 4, SP + 4)])
tail_quad("K_TB", P1, M1, 1, [], [])
tail_quad("K_TB", P1, M1, 2, ["s_nop 0", mf(ACC1, M1, SP)], [])
tail_quad("K_TB", P1, M1, 3, [], [])
a("s_nop 1")
a(mf(ACC1, M1 + 4, SP + 4))
a.label("K_DRAINED")
stamp(9, 14)
a(f"""
s_cmp_lg_u32 s{sMODE}, 0
s_cbranch_scc1 K_SLOW_NEXT
""")
a.label("K_EPI")
AF = M0
PD = BF0
for fb, ACC in enumerate((ACC0, ACC1)):
    for i in range(8):
        a(f"v_pk_mul_f32 {v(ACC + 2 * i, 2)}, {v(ACC + 2 * i, 2)}, {s(sLN2, 2)}")
    for i in range(8):
        a(f"v_cvt_pk_bf16_f32 v{AF + 8 * fb + i}, v{ACC + 2 * i}, v{ACC + 2 * i + 1}")
a("s_nop 1")
for st in range(4):
    a(mf(P0, AF + 4 * st, WH2 + 8 * st, 0 if st == 0 else None))
for st in range(4):
    a(mf(P1, AF + 4 * st, WH2 + 8 * st + 4, 0 if st == 0 else None))
for st in range(4):
    a(mf(PD, WX + 4 * st, AF + 4 * st, 0 if st == 0 else None))
a("s_waitcnt vmcnt(0)")
for j in range(3):
    a(f"v_and_b32 v{DD + 3 + j}, 0xffff0000, v{DD + j}")
    a(f"v_lshlrev_b32 v{DD + j}, 16, v{DD + j}")
for i in range(6):
    a(f"v_lshlrev_b32 v{HR + i}, 16, v{HR + i}")
a(f"v_lshlrev_b32 v{PR}, 16, v{PR}")
E_ = ACC0
for fb, P in enumerate((P0, P1)):
    for j in range(3):
        a(f"v_add_f32 v{DD + 3 * fb + j}, v{DD + 3 * fb + j}, v{P + 4 * j}")
for i in range(6):
    a(f"v_mul_f32 v{E_ + i}, s{sNL}, v{DD + i}")
for i in range(6):
    a(f"v_exp_f32 v{E_ + i}, v{E_ + i}")
for i in range(6):
    a(f"v_add_f32 v{E_ + i}, 1.0, v{E_ + i}")
for i in range(6):
    a(f"v_rcp_f32 v{E_ + i}, v{E_ + i}")
for i in range(6):
    a(f"v_fmac_f32 v{HR + i}, v{DD + i}, v{E_ + i}")
for i in range(3):
    a(f"v_cvt_pk_bf16_f32 v{HR + i}, v{HR + i}, v{HR + 3 + i}")
a(f"""
v_add_f32 v{PR}, v{PR}, v{PD}
s_mov_b32 s{sT}, 1280000
v_cvt_pk_bf16_f32 v{PR}, v{PR}, v{PR}
""")
for j in range(2):
    a(f"buffer_store_short v{HR + j}, v{vOo}, {s(rOUT, 4)}, 0 offen offset:{256 * j}")
    a(f"buffer_store_short_d16_hi v{HR + j}, v{vOo}, {s(rOUT, 4)}, 0 offen offset:{256 * j + 64}")
a(f"""
s_cmp_eq_u32 s{sSZ}, 5
s_mov_b32 exec_hi, 0
s_cbranch_scc0 K_FOUR
buffer_store_short v{HR + 2}, v{vOo}, {s(rOUT, 4)}, 0 offen offset:512
buffer_store_short_d16_hi v{HR + 2}, v{vOo}, {s(rOUT, 4)}, 0 offen offset:576
K_FOUR:
s_movk_i32 s{sT + 1}, 0x7777
s_cselect_b32 s{sT + 1}, 0x77777, s{sT + 1}
s_lshl_b32 exec_lo, s{sT + 1}, 1
buffer_store_short v{PR}, v{vPo}, {s(rOUT, 4)}, s{sT} offen
""")
if STAMPS:
    a(f"v_writelane_b32 v{vST}, s{sT + 7}, 10")
    a("s_waitcnt vmcnt(0)")
    stamp(11)
    a(f"""
    s_mov_b64 exec, 0xffff
    s_lshl_b32 s100, s2, 4
    s_add_u32 s100, s100, s{sW}
    s_lshl_b32 s100, s100, 6
    s_add_u32 s100, s100, {ST_OFF}
    v_lshl_add_u32 v{vST - 1}, v{vL}, 2, s100
    global_store_dword v{vST - 1}, v{vST}, {s(sWS, 2)}
    """)
a.label("K_END")
a("s_endpgm")

a.label("K_GEMM")
for st in range(4):
    a(f"ds_read_b128 {v(HB + 4 * st, 4)}, v{vHr + st}")
    for u in range(2):
        a(f"ds_read_b64_tr_b16 {v(WA + 4 * st + 2 * u, 2)}, v{vWr} offset:{(16 * st + 4 * u) * 128}")
for st in range(4):
    a(f"s_waitcnt lgkmcnt({9 - st})")
    a(mf(G0, HB + 4 * st, WA + 4 * st, 0 if st == 0 else None))
    for u in range(2):
        a(f"ds_read_b64_tr_b16 {v(WA + 16 + 4 * st + 2 * u, 2)}, v{vWr} offset:{(16 * st + 4 * u) * 128 + 64}")
for st in range(4):
    a(f"s_waitcnt lgkmcnt({6 - 2 * st})")
    a(mf(G1, HB + 4 * st, WA + 16 + 4 * st, 0 if st == 0 else None))
a("s_nop 6")
for G in (G0, G1):
    for i in range(5):
        a(f"v_pk_mul_f32 {v(G + 2 * i, 2)}, {v(G + 2 * i, 2)}, {s(sLN2, 2)}")
for r in range(10):
    a(f"v_cvt_pk_bf16_f32 v{G0 + r}, v{G0 + r}, v{G1 + r}")
a(f"s_setpc_b64 {s(sRET, 2)}")

a(f"""
K_NONCE:
s_mov_b32 s{sT}, 0
K_NONCE_L:
global_load_dwordx2 {v(t0, 2)}, v{vZ}, {s(sDBG, 2)} sc1
s_add_u32 s{sT}, s{sT}, 1
s_waitcnt vmcnt(0)
v_readfirstlane_b32 s{sTAG}, v{t0}
v_readfirstlane_b32 s{sTAG + 1}, v{t0 + 1}
s_cmp_gt_u32 s{sT}, 0x200000
s_cbranch_scc1 K_END
s_cmp_eq_u32 s{sTAG}, 0
s_cbranch_scc1 K_NONCE_L
s_branch K_NONCED
K_REPOLL:
s_cmp_lt_u32 s{sT + 7}, 0x200000
s_cbranch_scc1 K_POLL
s_endpgm
K_LONG:
global_load_dword v{REC1 + 10}, v{vAX}, {s(sWS, 2)} offset:80 sc1
global_load_dword v{REC1 + 11}, v{vAX + 1}, {s(sWS, 2)} offset:80 sc1
v_cmp_lt_i32 vcc, 0x60, v{t0}
s_mov_b64 {s(sR2 + 2, 2)}, vcc
v_cmp_lt_i32 vcc, 0x80, v{t0}
s_cbranch_vccz K_LONG_BACK
v_mov_b32 v{t1}, 1
ds_write_b32 v{vZ}, v{t1} offset:{L_FLAG}
s_branch K_LONG_BACK
K_EVENT:
s_cmp_eq_u32 s{sLA}, 1
s_cbranch_scc0 K_EVENT2
""")
emit(dma_ea(vE2))
a(f"""
s_cmp_gt_u32 s{sNT}, {LATE_AT}
s_cselect_b32 s{sLA}, {LATE_AT}, 0
s_mov_b32 s{sEV}, {opt("p1at", 2)}
s_branch K_EVENT_BACK
K_EVENT2:
{"s_setprio 1" if PRIO else ""}
s_branch K_EVENT_BACK
K_LATE_IN:
s_call_b64 {s(sRET, 2)}, K_LATE
{"s_setprio 2" if PRIO else ""}
s_branch K_LATE_BACK
K_LATE:
""")
for j in range(3):
    for fb in range(2):
        a(f"buffer_load_ushort v{HR + 3 * fb + j}, v{vOo}, {s(rH, 4)}, 0 offen offset:{64 * fb + 256 * j}")
a(f"buffer_load_ushort v{PR}, v{vPo}, {s(rPOS, 4)}, 0 offen")
a(f"s_setpc_b64 {s(sRET, 2)}")
a(f"""
K_R2:
v_cmp_lt_i32 {s(sM, 2)}, 64, v{vRX}
v_cmp_lt_i32 {s(sM + 2, 2)}, 64, v{vRX + 1}
""")
scatter([REC1 + 10, REC1 + 11], [0, 1], [20, 20], [s(sM, 2), s(sM + 2, 2)])
a(f"""
s_cmp_eq_u64 {s(sR2 + 2, 2)}, 0
s_cbranch_scc1 K_PROCESS
global_load_dword v{REC1}, v{vAX}, {s(sWS, 2)} offset:96 sc1
global_load_dword v{REC1 + 1}, v{vAX + 1}, {s(sWS, 2)} offset:96 sc1
global_load_dword v{REC1 + 2}, v{vAX}, {s(sWS, 2)} offset:112 sc1
global_load_dword v{REC1 + 3}, v{vAX + 1}, {s(sWS, 2)} offset:112 sc1
v_subrev_u32 v{vRX}, 64, v{vRX}
v_subrev_u32 v{vRX + 1}, 64, v{vRX + 1}
v_cmp_lt_i32 {s(sM, 2)}, 16, v{vRX}
v_cmp_lt_i32 {s(sM + 2, 2)}, 16, v{vRX + 1}
v_cmp_lt_i32 {s(sM + 4, 2)}, 32, v{vRX}
v_cmp_lt_i32 {s(sM + 6, 2)}, 32, v{vRX + 1}
s_waitcnt vmcnt(0)
""")
scatter([REC1 + i for i in range(4)], [0, 1, 0, 1], [24, 24, 28, 28], [s(sM + 2 * i, 2) for i in range(4)])
a("s_branch K_PROCESS")

a(f"""
K_SLOW_INIT:
s_mov_b32 s{sC}, 0
s_branch K_SLOW_CHUNK
K_SLOW_NEXT:
s_waitcnt vmcnt(0) lgkmcnt(0)
s_mov_b32 s{sMODE}, 2
s_add_u32 s{sJ}, s{sJ}, {4 * YC}
s_cmp_lt_u32 s{sJ}, s{sEND}
s_cbranch_scc1 K_SLOW_ROUND
s_add_u32 s{sC}, s{sC}, 1
s_cmp_ge_u32 s{sC}, 256
s_cbranch_scc1 K_EPI
K_SLOW_CHUNK:
s_lshl_b32 s{sT}, s{sC}, 8
s_add_u32 s{sT}, s{sT}, s{sBIN}
s_lshl_b32 s{sT}, s{sT}, 5
s_add_u32 s{sT}, s{sT}, {OFF_OFF}
v_mov_b32 v{t0}, s{sT}
global_load_dword v{t1}, v{t0}, {s(sWS, 2)} sc1
global_load_dword v{t2}, v{t0}, {s(sWS, 2)} offset:24 sc1
s_waitcnt vmcnt(0)
v_readfirstlane_b32 s{sJ}, v{t1}
v_readfirstlane_b32 s{sEND}, v{t2}
s_and_b32 s{sJ}, s{sJ}, 0xffff
s_and_b32 s{sEND}, s{sEND}, 0xffff
K_SLOW_ROUND:
s_waitcnt lgkmcnt(0)
s_barrier
""")
init_lists(P1)
a(f"""
s_mul_i32 s{sT + 2}, s{sC}, 2500
s_mul_i32 s{sT + 3}, s{sC}, {RSTR}
v_lshl_add_u32 v{t0}, v0, 2, s{sJ}
s_add_u32 s{sT + 4}, s{sJ}, {4 * YC}
s_min_u32 s{sT + 4}, s{sT + 4}, s{sEND}
v_cmp_gt_u32 vcc, s{sT + 4}, v{t0}
v_min_u32 v{t0}, {RSTR - 4}, v{t0}
v_add_u32 v{t0}, s{sT + 3}, v{t0}
global_load_dword v{REC1}, v{t0}, {s(sWS, 2)} sc1
s_lshl_b32 s{sT}, s{sW}, 11
s_add_u32 s{sEAd}, s{sT}, {L_EA}
s_waitcnt vmcnt(0) lgkmcnt(0)
s_barrier
v_lshrrev_b32 v{t0}, 13, v{REC1}
v_and_b32 v{t0}, 12, v{t0}
v_bfe_u32 v{t1}, v{REC1}, 14, 1
v_lshlrev_b32 v{t1}, 4, v{t1}
v_lshlrev_b32 v{t2}, v{t1}, 4
v_lshrrev_b32 v{RA + 1}, 20, v{REC1}
v_add_u32 v{RA + 1}, s{sT + 2}, v{RA + 1}
v_and_b32 v{RA}, s{sT + 6}, v{REC1}
s_mov_b64 exec, vcc
ds_add_rtn_u32 v{t0}, v{t0}, v{t2} offset:{L_CNT}
s_waitcnt lgkmcnt(0)
v_bfe_u32 v{t0}, v{t0}, v{t1}, 16
v_subrev_u32 v{t0}, {RSTR}, v{t0}
v_lshlrev_b32 v{t0}, 1, v{t0}
ds_write_b64 v{t0}, {v(RA, 2)} offset:{L_LS - 256}
s_mov_b64 exec, -1
s_waitcnt lgkmcnt(0)
s_barrier
ds_read_u16 v{t1}, v{cA2} offset:{L_CNT}
s_lshl_b32 s{sT}, s{sW}, 3
s_mul_i32 s{sX}, s{sW}, {LSTR // 2}
s_add_u32 s{sX}, s{sX}, {BIAS + 4 * XC}
s_waitcnt lgkmcnt(0)
v_readlane_b32 s{sNT}, v{t1}, s{sT}
s_sub_u32 s{sNT}, s{sNT}, s{sX}
s_lshl_b32 s{sNT}, s{sNT}, 1
s_branch K_PROCESS
""")

a.raw('.section .rodata,"a"')
a.raw(".p2align 6")
a.raw(f".amdhsa_kernel {NAME}")
a.raw(f"  .amdhsa_next_free_vgpr {NVGPR}")
a.raw("  .amdhsa_next_free_sgpr 102")
a.raw(f"  .amdhsa_accum_offset {NVGPR}")
a.raw("  .amdhsa_group_segment_fixed_size 0")
a.raw("  .amdhsa_kernarg_size 88")
a.raw("  .amdhsa_user_sgpr_count 2")
a.raw("  .amdhsa_user_sgpr_kernarg_segment_ptr 1")
a.raw("  .amdhsa_system_sgpr_workgroup_id_x 1")
a.raw("  .amdhsa_float_denorm_mode_32 3")
a.raw(".end_amdhsa_kernel")

probs = check_hazards([l for l in a.lines if not l.startswith(";") and not l.startswith(" ")])
for p in probs:
    print(p, file=sys.stderr)
open(sys.argv[1], "w").write(a.text())
print(f"wrote {sys.argv[1]}: {len(a.lines)} lines, {len(probs)} hazards, LDS {LDS}", file=sys.stderr)
```

```python
import sys
src, dst, kern, idx, mode = sys.argv[1], sys.argv[2], int(sys.argv[3]), int(sys.argv[4]), sys.argv[5]
s = open(src).read()
lines = s.split('\n')
i = [k for k, l in enumerate(lines) if l.startswith('; @launch')]
if 'kernel=' not in lines[i[0]]:
    lines[i[0]] = lines[i[0]].replace('@launch', '@launch kernel=standalone__cheap_equivariant_egnn__graph_kernel')
lines[i[-1] + 1:i[-1] + 1] = ['; @launch kernel=diag_kernel grid=(1,1,1) block=(64,1,1) lds=0']
ST = 10 << 20
base0 = int(sys.argv[6]) if len(sys.argv) > 6 else 0
off = ST + (kern << 19) + idx * 4
diff = mode.startswith('diff')
if diff:
    _, idx2, sh = mode.split(':'); idx2 = int(idx2); sh = int(sh)
body = f"""
.globl diag_kernel
.p2align 8
.type diag_kernel,@function
diag_kernel:
    s_cmp_lg_u32 s2, 0
    s_cbranch_scc1 DG_END
    s_load_dwordx2 s[4:5], s[0:1], 80
    v_lshrrev_b32 v1, 3, v0
    v_and_b32 v2, 7, v0
    v_lshl_add_u32 v1, v1, 4, v2
    v_lshlrev_b32 v1, 6, v1
    v_add_u32 v2, {ST + (base0 << 19)}, v1
    v_add_u32 v3, {off}, v1
    v_mov_b32 v4, -1
    v_mov_b32 v5, 0
    v_mov_b32 v6, -1
    v_mov_b32 v9, 0
    s_mov_b32 s6, 0
    s_waitcnt lgkmcnt(0)
DG_L:
    global_load_dword v7, v2, s[4:5]
    global_load_dword v8, v3, s[4:5]
    {"global_load_dword v10, v3, s[4:5] offset:%d" % (4 * (idx2 - idx) if diff else 0) if diff else ""}
    s_waitcnt vmcnt(0)
    {"v_sub_u32 v8, v8, v10" if diff else ""}
    v_min_u32 v4, v4, v7
    v_max_u32 v5, v5, v8
    v_min_u32 v6, v6, v8
    v_add_u32 v9, v9, v8
    v_add_u32 v2, 8192, v2
    v_add_u32 v3, 8192, v3
    s_add_u32 s6, s6, 1
    s_cmp_lt_u32 s6, 32
    s_cbranch_scc1 DG_L
    s_mov_b32 s6, 0
    s_mov_b32 s7, -1
    s_mov_b32 s8, 0
    s_mov_b32 s9, -1
    s_mov_b32 s10, 0
DG_R:
    s_nop 4
    v_readlane_b32 s11, v4, s6
    v_readlane_b32 s12, v5, s6
    v_readlane_b32 s13, v6, s6
    v_readlane_b32 s14, v9, s6
    s_nop 4
    s_min_u32 s7, s7, s11
    s_max_u32 s8, s8, s12
    s_min_u32 s9, s9, s13
    s_add_u32 s10, s10, s14
    s_add_u32 s6, s6, 1
    s_cmp_lt_u32 s6, 64
    s_cbranch_scc1 DG_R
    s_lshl_b32 s11, s7, 11
    {"" if diff else "s_sub_u32 s10, s10, s11"}
    s_lshr_b32 s10, s10, {11 + (sh if diff else 0)}
    s_sub_u32 s8, s8, s7
    s_sub_u32 s9, s9, s7
    s_mov_b32 s12, {'s8' if mode == 'max' else 's9' if mode == 'min' else 's10' if mode == 'mean' or diff else '0'}
    s_lshl_b32 s12, s12, 3
    s_min_u32 s12, s12, 40000
    s_add_u32 s12, s12, 10000
    s_mov_b32 s6, 0
DG_S:
    s_memrealtime s[14:15]
    s_waitcnt lgkmcnt(0)
    s_sub_u32 s14, s14, s7
    s_add_u32 s6, s6, 1
    s_cmp_gt_u32 s6, 1000000
    s_cbranch_scc1 DG_END
    s_cmp_lt_u32 s14, s12
    s_cbranch_scc1 DG_S
DG_END:
    s_endpgm
.section .rodata,"a"
.p2align 6
.amdhsa_kernel diag_kernel
  .amdhsa_next_free_vgpr 16
  .amdhsa_next_free_sgpr 32
  .amdhsa_accum_offset 16
  .amdhsa_group_segment_fixed_size 0
  .amdhsa_kernarg_size 88
  .amdhsa_user_sgpr_count 2
  .amdhsa_user_sgpr_kernarg_segment_ptr 1
  .amdhsa_system_sgpr_workgroup_id_x 1
.end_amdhsa_kernel"""
t = '\n'.join(lines).replace('.section .rodata,"a"', body, 1)
open(dst, 'w').write(t)
```

```python
import sys
from asmlib import Asm, v, s, check_hazards

OPT = dict(a.split("=") for a in sys.argv[2:] if "=" in a)


def opt(k, d):
    return int(OPT.get(k, d))


NAME = "standalone__cheap_equivariant_egnn__graph_kernel"
NLOG2E = 0xBFB8AA3B
NLN2 = 0xBF317218
RSTR = 10240
OFF_OFF = 3 << 20
BP_OFF = 5 << 20
L_CNT = 0
L_FLAG = 32
L_WB = 64
L_LS = 256
LSTR = 4112
L_POS = L_LS + 8 * LSTR + 272
L_EA = (L_POS + 60416 + 2047) // 2048 * 2048
L_BF = L_EA + 16384
L_SP = L_BF + 32768
SPR = 56
L_LUT = L_SP + 8 * 32 * SPR
LDS = L_LUT + 8 * 192
L_HC = L_POS
L_WE = L_EA
L_WH = L_WE + 19456
L_H = L_WH + 16384
L_AP = L_H + 5120
L_DP = L_AP + 5120
L_STG = L_DP + 5120
L_WX = L_STG + 10240
assert L_WX + 1024 <= L_LUT and L_H % 128 == 0
XC, YC = 96, 384
BIAS = 10240 + 128
assert L_POS % 16 == 0 and L_POS + 8192 < 65536

a = Asm()
HEADER = open("standalone__cheap_equivariant_egnn__graph.s.ref").read().split("; @launch")[0]
a.raw(HEADER.rstrip())
a.raw(f"; @launch grid=(256,1,1) block=(512,1,1) lds={LDS}")
a.raw('.amdgcn_target "amdgcn-amd-amdhsa--gfx950"')
a.raw(".text")
a.raw(f".globl {NAME}")
a.raw(".p2align 8")
a.raw(f".type {NAME},@function")
a.label(NAME)


def srd(d, base, nrec, off=0, stride=0):
    if off:
        a(f"s_add_u32 {s(d)}, {s(base)}, {off}")
        a(f"s_addc_u32 {s(d + 1)}, {s(base + 1)}, {stride << 16}")
    else:
        a(f"s_mov_b32 {s(d)}, {s(base)}")
        if stride:
            a(f"s_or_b32 {s(d + 1)}, {s(base + 1)}, {stride << 16}")
        else:
            a(f"s_mov_b32 {s(d + 1)}, {s(base + 1)}")
    a(f"s_mov_b32 {s(d + 2)}, {nrec}")
    a(f"s_mov_b32 {s(d + 3)}, 0x20000")


STAMPS = opt("stamps", 0)
ST_OFF = (10 << 20) + (1 << 19)
vST = 255


def stamp(i, cyc=None):
    if STAMPS:
        a("s_memrealtime s[100:101]")
        a("s_waitcnt lgkmcnt(0)")
        a(f"v_writelane_b32 v{vST}, s100, {i}")
        if cyc is not None:
            a("s_memtime s[100:101]")
            a("s_waitcnt lgkmcnt(0)")
            a(f"v_writelane_b32 v{vST}, s100, {cyc}")


def emit(L):
    for x in L:
        a(x)


sW = 3
sH, sPOS, sEAT, sSRC, sDST, sWE, sWXp, sWH = 4, 6, 8, 10, 12, 14, 16, 18
sOUT, sDBG, sWS = 20, 22, 24
sTAG = 26
rBP, rEA, rPOS, rH, rOUT, rX = 28, 32, 36, 40, 44, 48
sBF = 52
sI1, sI2, sLN2, sRET = 56, 58, 60, 62
sM = 64
sBIN, sN0, sMODE, sNT, sEAd, sG, sNL, sSZ = 84, 85, 86, 87, 88, 89, 90, 91
sT = 92
sX, sEV, sLA, sQ = 10, 11, 12, 13
sR2 = 14
sNB, sRK = 18, 19
sC, sJ, sEND = 48, 49, 50

vL = 1
pS1, pS4, pE, vEArd = 2, 3, 4, 5
vBF = 6
vI = 10
vEi = 18
vTR, vLUTb, vSb, vSaddr, vPc, vKf, vCf = 20, 21, 22, 23, 24, 25, 26
vRec, vPa, vLa, vAs, vBs, vZ, vQ = 27, 28, 29, 30, 31, 32, 33
cS1, cS4, cE, cEA = 34, 35, 36, 37
vE2 = 38
OH = 40
T = 44
EA = 48
P0, P1 = 52, 68
ACC0, ACC1 = 84, 100
M0, M1 = 116, 124
BF0, BF1 = 132, 140
SP = 148
PERM = 156
W4H = 164
cA2, cB2, cMid, cAi, cBi, cAP, cPo, vSZ = 172, 173, 174, 175, 176, 177, 178, 179
WH2 = 180
WX = 212
DD = 228
HR = 234
PR = 240
vOo, vPo, vWarm = 241, 242, 243
OB = 244
W3 = 248
vOA = 250
vL16 = 252
NVGPR = 256
e_, hf_, t0, t1, t2, t3 = BF0, BF0 + 1, BF0 + 2, BF0 + 3, BF0 + 4, BF0 + 5
vJ, vCA, vDT, vDS, vS12 = BF0 + 6, BF0 + 8, BF0 + 9, BF0 + 10, BF0 + 11
vTB = BF0 + 7
vCB = BF0 + 12
vRB = BF0 + 14
ENT = SP
vJA, vRM = SP + 4, SP + 6
GR = M0
REC1 = P0
vJX, vRX, vAX = P0 + 12, P0 + 14, EA
RA = P1
PAIR = ACC0


def init_lists(t):
    a(f"""
    s_mul_i32 s{sT}, s{sW}, {LSTR}
    v_lshl_add_u32 v{t + 4}, v{vL}, 4, s{sT}
    v_mov_b32 v{t}, 0xa2710
    v_mov_b32 v{t + 1}, v{t}
    v_mov_b32 v{t + 2}, v{t}
    v_mov_b32 v{t + 3}, v{t}
    s_lshl_b32 s{sT + 1}, s{sW}, 1
    s_lshr_b32 s{sT}, s{sT}, 1
    s_add_u32 s{sT}, s{sT}, {BIAS + 4 * XC}
    v_mov_b32 v{t + 5}, s{sT + 1}
    v_mov_b32 v{t + 6}, s{sT}
    ds_write_b128 v{t + 4}, {v(t, 4)} offset:{L_LS}
    ds_write_b128 v{t + 4}, {v(t, 4)} offset:{L_LS + 1024}
    ds_write_b128 v{t + 4}, {v(t, 4)} offset:{L_LS + 2048}
    ds_write_b128 v{t + 4}, {v(t, 4)} offset:{L_LS + 3072}
    ds_write_b16 v{t + 5}, v{t + 6} offset:{L_CNT}
    ds_write_b16 v{t + 5}, v{t + 6} offset:{L_CNT + 16}
    ds_write_b32 v{vZ}, v{vZ} offset:{L_FLAG}
    ds_write_b32 v{vZ}, v{vZ} offset:{L_POS - 4}
    """)


D_, S_, A_, R_, B_ = 52, 58, 64, 70, 76
x0 = 84
vT16, vG2, vE4, vE5, vFour, vWB, vOwn, vPF, vPF5, vStg = 100, 101, 102, 103, 104, 105, 106, 107, 108, 109
vNon = 110
HB, WA, G0, G1 = 180, 196, 116, 84
vWr, vHr, vGo = T + 1, EA, T + 2
LU = 228
stamp(0, 12)
a(f"""
s_load_dwordx4 s[28:31], s[0:1], 24
s_mul_i32 s{sT + 2}, s2, 10000
v_lshlrev_b32 v{vT16}, 4, v0
v_add_u32 v{vG2}, s{sT + 2}, v{vT16}
s_add_u32 s{sT + 2}, s{sT + 2}, 8192
v_min_u32 v{x0 + 4}, 451, v0
v_lshl_add_u32 v{x0 + 4}, v{x0 + 4}, 2, s{sT + 2}
s_cmp_ge_u32 s2, 256
s_cbranch_scc1 K_END
v_lshrrev_b32 v2, 6, v0
v_and_b32 v{vL}, 63, v0
v_readfirstlane_b32 s{sW}, v2
v_mov_b32 v{vZ}, 0
v_pk_mov_b32 {v(x0, 2)}, 0, 0
v_pk_mov_b32 {v(x0 + 2, 2)}, 0, 0
s_waitcnt lgkmcnt(0)
global_load_dwordx4 {v(D_, 4)}, v{vG2}, s[30:31]
global_load_dword v{D_ + 4}, v{x0 + 4}, s[30:31]
s_load_dwordx16 s[4:19], s[0:1], 0
s_load_dwordx4 s[20:23], s[0:1], 64
s_load_dwordx2 s[24:25], s[0:1], 80
ds_write_b128 v{vT16}, {v(x0, 4)} offset:{L_HC}
ds_write_b128 v{vZ}, {v(x0, 4)} offset:{L_WB}
ds_write_b128 v{vZ}, {v(x0, 4)} offset:{L_WB + 16}
s_and_b32 s{sT + 3}, s2, 7
s_lshl_b32 s{sBIN}, s{sT + 3}, 5
s_lshr_b32 s{sT + 7}, s2, 3
s_add_u32 s{sBIN}, s{sBIN}, s{sT + 7}
s_mul_i32 s{sN0}, s{sBIN}, 5000
s_add_u32 s{sN0}, s{sN0}, 127
s_lshr_b32 s{sN0}, s{sN0}, 7
v_lshlrev_b32 v{vL16}, 4, v{vL}
v_xor_b32 v{x0 + 5}, v{vT16}, v0
v_and_b32 v{x0 + 5}, 0x70, v{x0 + 5}
v_lshrrev_b32 v{x0 + 6}, 3, v0
v_lshl_or_b32 v{x0 + 5}, v{x0 + 6}, 7, v{x0 + 5}
v_add_u32 v{x0 + 6}, 0x2000, v{vT16}
s_lshl_b32 s{sT + 4}, s{sW}, 10
s_add_u32 m0, s{sT + 4}, {L_WE + 8192}
s_waitcnt lgkmcnt(0)
s_barrier
global_load_dwordx4 {v(S_, 4)}, v{vG2}, s[28:29]
global_load_dword v{S_ + 4}, v{x0 + 4}, s[28:29]
global_load_lds_dwordx4 v{x0 + 6}, {s(sWE, 2)}
""")
srd(rH, sH, 1280000)
a(f"""
s_cmp_ge_u32 s{sW}, 5
s_cbranch_scc1 K_TOUCH
s_add_u32 m0, s{sT + 4}, {L_H}
s_lshl_b32 s{sT}, s{sN0}, 7
buffer_load_dwordx4 v{x0 + 5}, {s(rH, 4)}, s{sT} offen lds
s_add_u32 s{sT + 5}, s{sT + 4}, 16384
s_cmp_eq_u32 s{sW}, 3
s_cselect_b32 s{rX}, s{sWXp}, s{sWE}
s_cselect_b32 s{rX + 1}, s{sWXp + 1}, s{sWE + 1}
s_movk_i32 s{rX + 2}, 18560
s_cselect_b32 s{rX + 2}, 128, s{rX + 2}
s_mov_b32 s{rX + 3}, 0x20000
s_cselect_b32 s{sT + 5}, 0, s{sT + 5}
s_xor_b32 s{sT}, s{sW}, 2
s_or_b32 s{sT}, s2, s{sT}
s_cbranch_scc0 K_MKTAG
K_TOUCHED:
v_cmp_gt_u32 vcc, 452, v0
v_mov_b32 v{vFour}, 4
v_lshlrev_b32 v{vE4}, 22, v0
v_add_u32 v{vE5}, 0x800, v0
v_lshlrev_b32 v{vE5}, 20, v{vE5}
s_mov_b64 {s(sM, 2)}, vcc
s_lshl_b32 s{sM + 2}, 0xfe, s{sW}
s_and_b32 s{sM + 2}, s{sM + 2}, 0xff
s_mov_b32 s{sM + 3}, 0
s_mov_b32 s{sM + 4}, 429497
s_mov_b32 s{sM + 5}, 0x1fffff
s_mov_b32 s{sM + 6}, 0x100000
s_mov_b32 s{sM + 7}, 0x200000
s_mov_b32 s{sM + 8}, 0x300000
s_movk_i32 s{sM + 9}, 0x1ffc
s_mul_i32 s{sT}, s2, {RSTR}
s_sub_u32 s{sT}, s{sT}, 2048
v_add_u32 v{vG2}, s{sT}, v{vT16}
v_lshlrev_b32 v{vWB}, 2, v{vL}
s_lshl_b32 s{sT}, s{sW}, 2
v_mov_b32 v{vOwn}, s{sT}
s_lshl_b32 s{sT + 6}, s{sT + 3}, 2
s_mul_i32 s{sT}, s2, 80000
v_lshl_add_u32 v{vPF}, v0, 7, s{sT}
s_add_u32 s{sT}, s{sT}, 65536
v_lshl_add_u32 v{vPF5}, v0, 5, s{sT}
v_add_u32 v{vStg}, {L_STG - 2048}, v{vT16}
s_lshl_b32 s{sT}, s2, 13
s_add_u32 s{sT}, s{sT}, {OFF_OFF}
v_add_u32 v{T}, s{sT}, v{vT16}
v_and_b32 v{e_}, 31, v{vL}
v_lshrrev_b32 v{hf_}, 5, v{vL}
v_and_b32 v{vJ}, 3, v0
v_bfe_u32 v{t2}, v{vL}, 2, 2
v_lshlrev_b32 v{vTB}, 3, v{vJ}
v_lshl_or_b32 v{vTB}, v{t2}, 7, v{vTB}
s_and_b32 s{sT}, s{sW}, 1
s_mul_i32 s{sT}, s{sT}, 10
v_lshrrev_b32 v{t0}, 3, v{e_}
v_lshl_or_b32 v{t0}, v{t0}, 2, v{vJ}
v_add_u32 v{t0}, s{sT}, v{t0}
v_xor_b32 v{t1}, v{t0}, v{hf_}
v_and_b32 v{t1}, 7, v{t1}
v_lshlrev_b32 v{t1}, 4, v{t1}
v_lshl_or_b32 v{t0}, v{t0}, 8, v{t1}
v_and_b32 v{t1}, 0x80, v{vTB}
s_mov_b32 s{sT + 1}, {L_H}
v_add3_u32 v{vHr}, v{t0}, v{t1}, s{sT + 1}
v_xor_b32 v{vHr + 1}, 32, v{vHr}
v_xor_b32 v{vHr + 2}, 64, v{vHr}
v_xor_b32 v{vHr + 3}, 0x60, v{vHr}
s_lshr_b32 s{sT + 1}, s{sW}, 1
s_cmp_eq_u32 s{sT + 1}, 0
s_cselect_b32 s{sT + 2}, 8192, 0
s_cmp_eq_u32 s{sT + 1}, 2
s_cselect_b32 s{sT + 2}, {L_WH - L_WE}, s{sT + 2}
s_cselect_b32 s{sLN2}, 1.0, {NLOG2E:#x}
s_mov_b32 s{sLN2 + 1}, s{sLN2}
s_add_u32 s{sT + 2}, s{sT + 2}, {L_WE}
v_and_b32 v{t1}, 16, v{vL}
v_lshl_or_b32 v{t0}, v{t1}, 1, v{vTB}
v_lshl_or_b32 v{t0}, v{hf_}, 10, v{t0}
v_add_u32 v{vWr}, s{sT + 2}, v{t0}
s_lshl_b32 s{sT}, s{sT}, 8
v_add_u32 v{vGo}, s{sT}, v{vWB}
s_waitcnt vmcnt(4)
""")
stamp(1)
for k in range(5):
    a(f"v_mul_u32_u24 v{D_ + k}, s{sM + 4}, v{D_ + k}")
    a(f"v_lshrrev_b32 v{A_ + k}, 19, v{D_ + k}")
    a(f"v_and_b32 v{A_ + k}, s{sM + 9}, v{A_ + k}")
for k in range(5):
    if k == 4:
        a(f"s_mov_b64 exec, {s(sM, 2)}")
    a(f"ds_add_rtn_u32 v{R_ + k}, v{A_ + k}, v{vFour} offset:{L_HC}")
a("s_mov_b64 exec, -1")
for k in range(5):
    a(f"v_and_b32_sdwa v{B_ + k}, 28, v{A_ + k} dst_sel:DWORD src0_sel:DWORD src1_sel:BYTE_1")
PF = opt("pf", 1)
NPF = {0: 0, 1: 2, 2: 1}[PF]
a(f"""
s_add_u32 m0, s{sT + 4}, {L_WE}
s_cmp_ge_u32 s{sW}, 4
global_load_lds_dwordx4 v{vT16}, {s(sWE, 2)}
s_cbranch_scc1 K_NOTAIL
s_add_u32 m0, s{sT + 4}, {L_WE + 16384}
s_cmp_eq_u32 s{sW}, 3
s_cselect_b32 m0, {L_WX}, m0
s_nop 0
buffer_load_dwordx4 v{vL16}, {s(rX, 4)}, s{sT + 5} offen lds
K_NOTAIL:
s_add_u32 m0, s{sT + 4}, {L_WH}
s_nop 0
global_load_lds_dwordx4 v{vT16}, {s(sWH, 2)}
s_add_u32 m0, s{sT + 4}, {L_WH + 8192}
s_nop 0
global_load_lds_dwordx4 v{x0 + 6}, {s(sWH, 2)}
""")
if PF:
    for k in range(5):
        a(f"v_cmp_eq_u32 {s(sM + 10 + 2 * k, 2)}, s{sT + 6}, v{B_ + k}")
    a(f"""
    s_or_b64 {s(sM + 10, 2)}, {s(sM + 10, 2)}, {s(sM + 12, 2)}
    s_or_b64 {s(sM + 14, 2)}, {s(sM + 14, 2)}, {s(sM + 16, 2)}
    s_or_b64 exec, {s(sM + 10, 2)}, {s(sM + 14, 2)}
    global_load_dword v{vAs}, v{vPF}, {s(sEAT, 2)}
    """)
    if PF == 1:
        a(f"""
        s_and_b64 exec, {s(sM + 18, 2)}, {s(sM, 2)}
        global_load_dword v{vBs}, v{vPF5}, {s(sEAT, 2)}
        """)
    a("s_mov_b64 exec, -1")
for k in range(5):
    a(f"""
    v_and_b32 v{x0}, s{sM + 5}, v{D_ + k}
    v_mul_u32_u24 v{x0}, 0x4e2, v{x0}
    v_lshrrev_b32 v{x0}, 29, v{x0}
    v_bfe_u32 v{D_ + k}, v{D_ + k}, 21, 3
    v_lshl_or_b32 v{D_ + k}, v{x0}, 3, v{D_ + k}
    v_lshl_or_b32 v{D_ + k}, v{D_ + k}, 14, v{vE4 if k < 4 else vE5}
    """)
c0 = x0
a(f"""
s_waitcnt lgkmcnt(0)
s_barrier
ds_read_b128 {v(c0, 4)}, v{vT16} offset:{L_HC}
s_waitcnt lgkmcnt(0)
v_add_u32 v{c0 + 4}, v{c0}, v{c0 + 1}
v_add_u32 v{c0 + 5}, v{c0 + 4}, v{c0 + 2}
v_add_u32 v{c0 + 6}, v{c0 + 5}, v{c0 + 3}
v_mov_b32 v{c0 + 7}, v{c0 + 6}
s_waitcnt vmcnt({3 + NPF})
s_nop 0
""")
fill = [f"v_or_b32 v{D_}, v{D_}, v{S_}"] + [f"v_or3_b32 v{D_ + k}, v{D_ + k}, v{S_ + k}, s{sM + 5 + k}" for k in (1, 2, 3)] + [f"v_or_b32 v{D_ + 4}, v{D_ + 4}, v{S_ + 4}"]
for n, ctl in enumerate(("row_shr:1 row_mask:0xf", "row_shr:2 row_mask:0xf", "row_shr:4 row_mask:0xf", "row_shr:8 row_mask:0xf",
                         "row_bcast:15 row_mask:0xa", "row_bcast:31 row_mask:0xc")):
    a(f"v_add_u32_dpp v{c0 + 7}, v{c0 + 7}, v{c0 + 7} {ctl} bank_mask:0xf")
    if n < 5:
        a(fill[n])
        a(f"v_add_u32 v{R_ + n}, {L_STG}, v{R_ + n}")
a(f"""
v_sub_u32 v{c0 + 8}, v{c0 + 7}, v{c0 + 6}
v_readlane_b32 s{sT}, v{c0 + 7}, 63
v_add_u32 v{c0 + 9}, v{c0 + 8}, v{c0}
v_add_u32 v{c0 + 10}, v{c0 + 8}, v{c0 + 4}
v_add_u32 v{c0 + 11}, v{c0 + 8}, v{c0 + 5}
v_mov_b32 v{c0 + 6}, s{sT}
ds_write_b128 v{vT16}, {v(c0 + 8, 4)} offset:{L_HC}
s_mov_b64 exec, {s(sM + 2, 2)}
ds_add_u32 v{vWB}, v{c0 + 6} offset:{L_WB}
s_mov_b64 exec, -1
v_lshl_or_b32 v{OH}, v{c0 + 9}, 16, v{c0 + 8}
v_lshl_or_b32 v{OH + 1}, v{c0 + 11}, 16, v{c0 + 10}
s_waitcnt lgkmcnt(0)
s_barrier
""")
for k in range(5):
    a(f"ds_read_b32 v{S_ + k}, v{A_ + k} offset:{L_HC}")
    a(f"ds_read_b32 v{B_ + k}, v{B_ + k} offset:{L_WB}")
a(f"""
ds_read_b32 v{vOwn}, v{vOwn} offset:{L_WB}
s_waitcnt lgkmcnt(0)
""")
for k in range(5):
    a(f"v_add3_u32 v{S_ + k}, v{S_ + k}, v{R_ + k}, v{B_ + k}")
for k in range(5):
    if k == 4:
        a(f"s_mov_b64 exec, {s(sM, 2)}")
    a(f"ds_write_b32 v{S_ + k}, v{D_ + k}")
a(f"""
s_mov_b64 exec, -1
v_add_u32 v{OH + 2}, v{c0 + 7}, v{vOwn}
v_lshl_or_b32 v{vOwn}, v{vOwn}, 16, v{vOwn}
v_add_u32 v{OH}, v{OH}, v{vOwn}
v_add_u32 v{OH + 1}, v{OH + 1}, v{vOwn}
s_waitcnt vmcnt({NPF})
s_cmp_lt_u32 s{sW}, 2
s_cbranch_scc1 K_BTASK
v_add_u32 v{x0}, 0x1000, v{vG2}
s_waitcnt lgkmcnt(0)
s_barrier
ds_read_b128 {v(D_, 4)}, v{vStg}
s_cmp_lt_u32 s{sW}, 4
s_cbranch_scc1 K_ONE
ds_read_b128 {v(S_, 4)}, v{vStg} offset:4096
s_waitcnt lgkmcnt(0)
global_store_dwordx4 v{x0}, {v(S_, 4)}, {s(sWS, 2)} sc1
K_ONE:
s_waitcnt lgkmcnt(0)
global_store_dwordx4 v{vG2}, {v(D_, 4)}, {s(sWS, 2)} sc1
""")
stamp(2)


def dma_range(tag, r, lds, first, end, step):
    if first:
        a(f"s_add_u32 s{sT + 4}, s{sT + 4}, {first}")
    a(f"""
    s_cmp_ge_u32 s{sT + 4}, {end}
    s_cbranch_scc1 {tag}_E
    {tag}_L:
    s_add_u32 m0, s{sT + 4}, {lds}
    s_nop 0
    buffer_load_dwordx4 v{vL16}, {s(r, 4)}, s{sT + 4} offen lds
    s_add_u32 s{sT + 4}, s{sT + 4}, {step}
    s_cmp_lt_u32 s{sT + 4}, {end}
    s_cbranch_scc1 {tag}_L
    {tag}_E:
    s_sub_u32 s{sT + 4}, s{sT + 4}, {end}
    """)


a(f"""
s_cmp_ge_u32 s{sW}, 6
s_cbranch_scc1 K_PUBLISH
s_call_b64 {s(sRET, 2)}, K_GEMM
s_lshr_b32 s{sT}, s{sW}, 2
s_mul_i32 s{sT}, s{sT}, 5120
s_add_u32 s{sT}, s{sT}, {L_AP}
v_add_u32 v{vGo}, s{sT}, v{vGo}
""")
for r in range(0, 10, 2):
    a(f"ds_write2st64_b32 v{vGo}, v{G0 + r}, v{G0 + r + 1} offset0:{r} offset1:{r + 1}")
a(f"""
K_PUBLISH:
s_load_dwordx2 {s(sTAG, 2)}, {s(sDBG, 2)}, 0
""")
srd(rPOS, sPOS, 60000)
a(f"""
v_lshlrev_b32 v{vPc}, 2, v{hf_}
s_lshl_b32 s{sT}, s{sBIN}, 3
s_add_u32 s{sT}, s{sT}, s{sW}
s_mul_i32 s{sT}, s{sT}, 625
s_add_u32 s{sT}, s{sT}, 127
s_lshr_b32 s{sT}, s{sT}, 7
v_add_u32 v{t0}, s{sT}, v{e_}
v_mad_u32_u24 v{t0}, v{t0}, 6, v{vPc}
v_add_u32 v{t1}, -2, v{t0}
buffer_load_ushort v{LU + 2}, v{t1}, {s(rPOS, 4)}, 0 offen
buffer_load_ushort v{LU + 3}, v{t0}, {s(rPOS, 4)}, 0 offen
""")
init_lists(P1)
srd(rBP, sWS, 10000, BP_OFF, 128)
srd(rEA, sEAT, 0 if opt("noea", 0) else 640000, 0, 32)
srd(rOUT, sOUT, 1340000)
a(f"""
v_lshrrev_b32 v{t0}, 7, v{vTB}
v_lshrrev_b32 v{t3}, 4, v{vL}
v_lshl_or_b32 v{t2}, v{t0}, 3, v{t3}
s_lshl_b32 s{sT}, s{sW}, 5
s_or_b32 s{sT}, s{sT}, s{sT + 3}
v_xor_b32 v{t2}, s{sT}, v{t2}
v_xor_b32 v{t3}, 4, v{t2}
s_lshl_b32 s{sT + 1}, s{sBIN}, 5
s_add_u32 s{sT + 1}, s{sT + 1}, {OFF_OFF}
v_and_or_b32 v{t1}, v{vTB}, 16, s{sT + 1}
v_lshl_add_u32 v{vOA}, v{t2}, 13, v{t1}
v_lshl_add_u32 v{vOA + 1}, v{t3}, 13, v{t1}
s_movk_i32 s{sT}, {RSTR}
v_mad_u32_u24 v{vRB}, v{t2}, s{sT}, s{sT}
v_mad_u32_u24 v{vRB + 1}, v{t3}, s{sT}, s{sT}
v_mul_u32_u24 v{vCB}, 2500, v{t2}
v_mul_u32_u24 v{vCB + 1}, 2500, v{t3}
v_mul_u32_u24 v{vS12}, 12, v{vJ}
v_lshlrev_b32 v{vCA}, 2, v{vJ}
s_mul_i32 s{sT + 1}, s{sW}, {32 * SPR}
s_add_u32 s{sT + 1}, s{sT + 1}, {L_SP}
v_or_b32 v{t0}, v{vPc}, v{t0}
v_mad_u32_u24 v{t0}, v{t0}, {SPR}, s{sT + 1}
v_bfe_u32 v{t1}, v{vL}, 4, 1
v_lshl_or_b32 v{t2}, v{t1}, 2, v{vJ}
v_min_u32 v{t2}, 5, v{t2}
v_lshl_add_u32 v{vTR}, v{t2}, 3, v{t0}
v_mad_u32_u24 v{t0}, v{e_}, {SPR}, v{vPc}
v_add_u32 v{vSb}, s{sT + 1}, v{t0}
v_mad_u32_u24 v{vSZ}, v{vL}, 28, s{sT + 1}
v_and_b32 v{t0}, 16, v{vL}
v_mov_b32 v{t3}, 0x3f80
v_lshlrev_b32 v{t0}, v{t0}, v{t3}
v_and_b32 v{t2}, 15, v{vL}
v_lshlrev_b32 v{t2}, 2, v{t2}
v_lshl_or_b32 v{cAP}, v{t1}, 1, v{t2}
v_lshl_or_b32 v{cAP}, v{hf_}, 7, v{cAP}
v_bfe_u32 v{t1}, v{vL}, 3, 1
v_lshl_or_b32 v{t1}, v{t1}, 2, v{vJ}
v_xor_b32 v{t2}, v{vL}, v{vPc}
v_and_b32 v{t2}, 4, v{t2}
v_lshl_or_b32 v{t1}, v{t2}, 1, v{t1}
v_lshlrev_b32 v{vJ}, 4, v{vJ}
v_subrev_u32 v{vJ}, s{sT}, v{vJ}
""")
for r in range(8):
    a(f"v_cmp_eq_u32 {s(sM + 2 * r, 2)}, {r}, v{t1}")
a(f"v_xor_b32 v{t1}, v{e_}, v{hf_}")
for r in range(8):
    a(f"v_cndmask_b32 v{PERM + r}, 0, v{t0}, {s(sM + 2 * r, 2)}")
a(f"""
v_cmp_eq_u32 vcc, 0, v{t1}
v_cmp_eq_u32 {s(sM, 2)}, 2, v{t1}
v_cmp_eq_u32 {s(sM + 2, 2)}, 4, v{t1}
v_mul_u32_u24 v{vLUTb}, 96, v{hf_}
v_cndmask_b32 v{LU}, 0, v{t3}, vcc
v_cndmask_b32 v{LU}, v{LU}, 1.0, {s(sM, 2)}
v_cndmask_b32 v{LU + 1}, 0, 1.0, {s(sM + 2, 2)}
s_mul_i32 s{sT}, s{sW}, 192
s_add_u32 s{sT}, s{sT}, {L_LUT}
v_lshl_add_u32 v{LU + 4}, v{e_}, 4, v{vLUTb}
v_add_u32 v{LU + 4}, s{sT}, v{LU + 4}
s_lshl_b32 s{sT}, s{sW}, 11
s_add_u32 s{sEAd}, s{sT}, {L_EA}
s_lshl_b32 s{sT}, s{sW}, 9
s_add_u32 s{sT}, s{sT}, {L_STG}
v_lshl_add_u32 v{vDT}, v{vL}, 2, s{sT}
v_and_b32 v{vDS}, -16, v{vDT}
v_lshrrev_b32 v{cAi}, 3, v{vL}
v_lshlrev_b32 v{cS4}, 3, v{cAi}
v_and_b32 v{cBi}, 7, v{vL}
v_lshlrev_b32 v{cA2}, 1, v{cAi}
v_lshlrev_b32 v{cB2}, 1, v{cBi}
v_mul_u32_u24 v{cMid}, {LSTR // 2}, v{cAi}
v_add_u32 v{cMid}, {BIAS + 4 * XC}, v{cMid}
v_lshlrev_b32 v{cS1}, 3, v{e_}
s_sub_u32 s{sRK}, 11, s{sW}
s_cmp_lt_u32 s{sW}, 4
s_cselect_b32 s{sRK}, s{sW}, s{sRK}
s_mov_b32 s{sNB}, s{sN0}
s_mul_i32 s{sT + 7}, s{sT + 7}, 320
s_mul_i32 s{sT}, s{sW}, 40
s_add_u32 s{sT + 7}, s{sT + 7}, s{sT}
v_add_u32 v{vWarm}, s{sT + 7}, v{vL}
v_lshlrev_b32 v{vOo}, 1, v{e_}
v_lshl_or_b32 v{vOo}, v{hf_}, 7, v{vOo}
v_xor_b32 v{t0}, v{vL16}, v{vL}
v_and_b32 v{vI + 1}, 0x70, v{t0}
v_xor_b32 v{vI + 3}, 64, v{vI + 1}
v_mov_b32 v{vI + 5}, v{vI + 1}
v_mov_b32 v{vI + 7}, v{vI + 3}
v_and_b32 v{vEi + 1}, 16, v{t0}
v_mov_b32 v{vE2 + 1}, v{vEi + 1}
v_lshl_or_b32 v{cE}, v{vL}, 2, 4
s_lshl_b32 s{sT}, s{sW}, 12
s_add_u32 s{sBF}, s{sT}, {L_BF}
s_add_u32 s{sBF + 1}, s{sBF}, 1024
s_add_u32 s{sBF + 2}, s{sBF}, 2048
s_add_u32 s{sBF + 3}, s{sBF}, 3072
v_lshlrev_b32 v{t1}, 4, v{hf_}
v_xor_b32 v{t0}, v{cS1}, v{t1}
v_and_b32 v{t0}, 0x70, v{t0}
v_lshl_or_b32 v{t0}, v{e_}, 7, v{t0}
v_add_u32 v{vBF}, s{sBF}, v{t0}
v_xor_b32 v{vBF + 1}, 32, v{vBF}
v_xor_b32 v{vBF + 2}, 64, v{vBF}
v_xor_b32 v{vBF + 3}, 0x60, v{vBF}
v_xor_b32 v{t0}, v{vOo}, v{t1}
v_and_b32 v{t0}, 16, v{t0}
v_lshl_or_b32 v{cEA}, v{e_}, 5, v{t0}
v_lshrrev_b32 v{t0}, 2, v{e_}
v_sub_u32 v{cPo}, v{e_}, v{t0}
v_cvt_f32_u32 v{vKf}, v{hf_}
v_add_f32 v{vCf}, -1.0, v{vKf}
s_movk_i32 s{sI1}, {0 if opt("bench", 0) else 256}
s_mov_b32 s{sI1 + 1}, s{sI1}
s_mov_b32 s{sI2}, s{sI1}
s_mov_b32 s{sNL}, {NLOG2E:#x}
""")
a(f"""
s_waitcnt lgkmcnt(0)
s_cmp_lg_u32 s{sTAG}, 0
s_cbranch_scc0 K_NONCE
K_NONCED:
s_and_b32 s{sTAG + 1}, s{sTAG + 1}, 0xffff
v_lshl_or_b32 v{OH + 2}, s{sTAG + 1}, 16, v{OH + 2}
v_mov_b32 v{OH + 3}, s{sTAG}
s_waitcnt vmcnt(0)
s_barrier
global_store_dwordx4 v{T}, {v(OH, 4)}, {s(sWS, 2)} sc1
""")
stamp(3)
NPW = opt("npw", 4)
a(f"""
s_cmp_ge_u32 s{sW}, {NPW}
s_cbranch_scc1 K_D5_E
""")
dma_range("K_D5", rPOS, L_POS, 0, 60416, 1024 * NPW)
poll_ld = [f"global_load_dwordx4 {v(GR, 4)}, v{vOA}, {s(sWS, 2)} sc1", f"global_load_dwordx4 {v(GR + 4, 4)}, v{vOA + 1}, {s(sWS, 2)} sc1"]
EPOLL = opt("epoll", 1)
if EPOLL:
    emit(poll_ld)
WR = P0
a(f"""
v_and_b32 v{t1}, 16, v{vL}
v_lshl_or_b32 v{t0}, v{t1}, 2, v{vTB}
v_lshl_or_b32 v{t0}, v{hf_}, 10, v{t0}
v_add_u32 v{t0}, {L_WE + 129 * 128}, v{t0}
v_and_b32 v{t2}, 15, v{vL}
v_lshlrev_b32 v{t2}, 1, v{t2}
v_lshl_or_b32 v{t2}, v{t1}, 2, v{t2}
v_add_u32 v{t2}, {L_WE + 128 * 128}, v{t2}
v_lshl_or_b32 v{t1}, v{t1}, 1, v{vTB}
v_lshl_or_b32 v{t1}, v{hf_}, 9, v{t1}
v_add_u32 v{t1}, {L_WH + 8192}, v{t1}
v_lshlrev_b32 v{t3}, 3, v{hf_}
v_add_u32 v{t3}, {L_WX}, v{t3}
""")
for b in range(2):
    for u in range(2):
        a(f"ds_read_b64_tr_b16 {v(WR + 4 * b + 2 * u, 2)}, v{t0} offset:{u * 512 + b * 32}")
a(f"""
ds_read_u16 v{W3}, v{t2}
ds_read_u16 v{W3 + 1}, v{t2} offset:32
""")
for st in range(4):
    b, t = st >> 1, st & 1
    a(f"ds_read2_b64 {v(WX + 4 * st, 4)}, v{t3} offset0:{4 * b + 8 * t} offset1:{4 * b + 8 * t + 2}")
wh = []
for st in range(4):
    b, t = st >> 1, st & 1
    for fb in range(2):
        for u in range(2):
            wh.append(f"ds_read_b64_tr_b16 {v(WH2 + 8 * st + 4 * fb + 2 * u, 2)}, v{t1} offset:{(16 * b + 32 * t + 8 * u) * 128 + 64 * fb}")
emit(wh[:4])
a(f"""
v_and_b32 v{t0}, 1, v{vL}
v_cmp_eq_u32 {s(sT + 4, 2)}, 1, v{t0}
s_mov_b32 s{sLN2}, s{sNL}
s_mov_b32 s{sLN2 + 1}, s{sNL}
s_mov_b32 s{sT + 6}, 0xe3fff
s_mov_b32 s{sT + 7}, 0
s_waitcnt lgkmcnt(3)
""")
emit(wh[4:])
for i in range(8):
    a(f"v_lshlrev_b32 v{t2}, 16, v{WR + i}")
    a(f"v_and_b32 v{t3}, 0xffff0000, v{WR + i}")
    a(f"v_pk_mul_f32 {v(t2, 2)}, {v(t2, 2)}, {s(sLN2, 2)}")
    a(f"v_cvt_pk_bf16_f32 v{W4H + i}, v{t2}, v{t3}")
a(f"""
v_mov_b32 v{t3}, s{sTAG + 1}
s_mov_b32 s{sLN2}, {NLN2:#x}
s_mov_b32 s{sLN2 + 1}, s{sLN2}
""")
stamp(4)

if not EPOLL:
    emit(poll_ld)
a(f"""
K_POLL:
s_add_u32 s{sT + 7}, s{sT + 7}, 1
s_waitcnt vmcnt(0)
v_cmp_ne_u32 vcc, s{sTAG}, v{GR + 3}
v_cmp_ne_u32 {s(sT, 2)}, s{sTAG}, v{GR + 7}
v_cmp_ne_u32_sdwa {s(sT + 2, 2)}, v{t3}, v{GR + 2} src0_sel:DWORD src1_sel:WORD_1
v_cmp_ne_u32_sdwa {s(sM, 2)}, v{t3}, v{GR + 6} src0_sel:DWORD src1_sel:WORD_1
v_cndmask_b32 v{ENT}, v{GR}, v{GR + 1}, {s(sT + 4, 2)}
v_cndmask_b32 v{ENT + 1}, v{GR + 1}, v{GR + 2}, {s(sT + 4, 2)}
v_cndmask_b32 v{ENT + 2}, v{GR + 4}, v{GR + 5}, {s(sT + 4, 2)}
v_cndmask_b32 v{ENT + 3}, v{GR + 5}, v{GR + 6}, {s(sT + 4, 2)}
s_or_b64 vcc, vcc, {s(sT, 2)}
s_or_b64 {s(sT + 2, 2)}, {s(sT + 2, 2)}, {s(sM, 2)}
s_or_b64 vcc, vcc, {s(sT + 2, 2)}
s_cbranch_scc1 K_REPOLL
""")
stamp(5)
for i in range(2):
    a(f"v_mov_b32_dpp v{vJA + i}, v{ENT + 2 * i} quad_perm:[0,0,0,0] row_mask:0xf bank_mask:0xf")
    a(f"v_mov_b32_dpp v{vRM + i}, v{ENT + 2 * i + 1} quad_perm:[3,3,3,3] row_mask:0xf bank_mask:0xf")
for i in range(2):
    a(f"v_add_u32_sdwa v{vJA + i}, v{vJA + i}, v{vJ} dst_sel:DWORD src0_sel:WORD_0 src1_sel:DWORD")
    a(f"v_alignbit_b32 v{ENT + 2 * i + 1}, v{ENT + 2 * i + 1}, v{ENT + 2 * i}, 16")
for i in range(2):
    a(f"v_add_u32 v{vRB + i}, v{vRB + i}, v{vJA + i}")
    a(f"v_pk_sub_u16 v{t0 + i}, v{ENT + 2 * i + 1}, v{ENT + 2 * i}")
    a(f"v_sub_u32 v{vAX + i}, v{vRB + i}, v{vS12}")
a(f"""
global_load_dwordx4 {v(REC1, 4)}, v{vRB}, {s(sWS, 2)} sc1
global_load_dwordx4 {v(REC1 + 4, 4)}, v{vRB + 1}, {s(sWS, 2)} sc1
global_load_dword v{REC1 + 8}, v{vAX}, {s(sWS, 2)} offset:64 sc1
global_load_dword v{REC1 + 9}, v{vAX + 1}, {s(sWS, 2)} offset:64 sc1
s_mov_b64 exec, 0xffff
ds_sub_rtn_u32 v{t2}, v{vCA}, v{t0} offset:{L_CNT + 16}
v_mov_b32 v{ENT}, v{ENT + 1}
s_not_b64 exec, exec
ds_add_rtn_u32 v{t2}, v{vCA}, v{t0} offset:{L_CNT}
s_mov_b64 exec, -1
ds_add_rtn_u32 v{t3}, v{vCA}, v{t1} offset:{L_CNT}
v_sub_u32_sdwa v{vRM}, v{vRM}, v{vJA} dst_sel:DWORD src0_sel:WORD_0 src1_sel:DWORD
v_sub_u32_sdwa v{vRM + 1}, v{vRM + 1}, v{vJA + 1} dst_sel:DWORD src0_sel:WORD_0 src1_sel:DWORD
s_movk_i32 s{sT}, {RSTR}
v_subrev_u32 v{vRM}, s{sT}, v{vRM}
v_subrev_u32 v{vRM + 1}, s{sT}, v{vRM + 1}
v_max_i32 v{t0}, v{vRM}, v{vRM + 1}
v_cmp_lt_i32 vcc, 0x50, v{t0}
s_mov_b64 {s(sR2, 2)}, vcc
s_cbranch_vccnz K_LONG
K_LONG_BACK:
v_cmp_gt_u32 vcc, 6, v{e_}
v_lshlrev_b32 v{LU + 2}, 16, v{LU + 2}
v_lshlrev_b32 v{LU + 3}, 16, v{LU + 3}
v_fma_f32 v{LU + 2}, v{LU + 2}, v{vKf}, -v{vCf}
s_mov_b64 exec, vcc
ds_write_b128 v{LU + 4}, {v(LU, 4)}
s_mov_b64 exec, -1
""")
for i in range(2):
    for k in range(4):
        a(f"v_cmp_lt_i32 {s(sM + 2 * (4 * i + k), 2)}, {4 * k}, v{vRM + i}")
    a(f"v_sub_u32 v{vJX + i}, v{vJA + i}, v{vS12}")
    a(f"v_add3_u32 v{vRX + i}, v{vRM + i}, v{vS12}, -16")
a(f"""
v_cmp_lt_i32 {s(sM + 16, 2)}, 48, v{vRX}
v_cmp_lt_i32 {s(sM + 18, 2)}, 48, v{vRX + 1}
s_waitcnt lgkmcnt(0)
s_barrier
ds_read_u16 v{OH}, v{cA2} offset:{L_CNT}
ds_read_u16 v{OH + 1}, v{cA2} offset:{L_CNT + 16}
ds_read_u16 v{OH + 2}, v{cB2} offset:{L_CNT}
ds_read_u16 v{OH + 3}, v{cB2} offset:{L_CNT + 16}
ds_read_b32 v{t1}, v{vZ} offset:{L_FLAG}
s_mov_b32 exec_hi, 0xff
buffer_load_dword v{vQ}, v{vWarm if opt("warm", 1) else vZ}, {s(rBP, 4)}, 0 idxen sc1
s_mov_b32 exec_hi, -1
v_pk_sub_u16 v{t2}, v{t2}, v{ENT}
v_pk_sub_u16 v{t3}, v{t3}, v{ENT + 2}
ds_write2st64_b32 v{vDT}, v{t2}, v{t3} offset1:1
s_waitcnt lgkmcnt(1)
v_sub_u32 v{t2}, v{OH}, v{OH + 1}
v_sub_u32 v{t3}, v{OH + 2}, v{OH + 3}
v_lshl_add_u32 v{t2}, v{t2}, 1, v{cAi}
v_lshl_add_u32 v{t3}, v{t3}, 1, v{cBi}
v_cmp_gt_u32 vcc, v{t3}, v{t2}
v_sub_u32 v{OH}, v{OH}, v{cMid}
v_sub_u32 v{OH + 2}, v{cMid}, v{OH + 1}
v_lshrrev_b64 {v(ENT, 2)}, v{cS4}, vcc
v_lshl_add_u32 v{OH}, v{t1}, 20, v{OH}
v_lshlrev_b32 v{OH + 2}, 2, v{OH + 2}
v_max_u32 v{OH}, v{OH}, v{OH + 2}
v_cmp_lt_u32 vcc, {4 * YC}, v{OH}
v_and_b32 v{ENT}, 0xff, v{ENT}
v_bcnt_u32_b32 v{ENT}, v{ENT}, 0
s_cmp_lg_u64 vcc, 0
v_cmp_eq_u32 vcc, s{sRK}, v{ENT}
s_cselect_b32 s{sMODE}, 1, 0
s_ff1_i32_b64 s{sG}, vcc
s_lshl_b32 s{sT}, s{sW}, 3
s_cmp_lg_u32 s{sMODE}, 0
s_cselect_b32 s{sG}, s{sT}, s{sG}
v_readlane_b32 s{sNT}, v{t2}, s{sG}
v_readlane_b32 s{sX}, v{OH + 1}, s{sG}
s_lshr_b32 s{sG}, s{sG}, 3
s_lshl_b32 s{sT}, s{sBIN}, 3
s_add_u32 s{sT}, s{sT}, s{sG}
s_mul_i32 s{sSZ}, s{sT}, 625
s_add_u32 s{sN0}, s{sSZ}, 127
s_lshr_b32 s{sN0}, s{sN0}, 7
s_sub_u32 s{sT}, s{sN0}, s{sNB}
s_lshl_b32 s{sT}, s{sT}, 7
s_add_u32 s{sT}, s{sT}, {L_AP}
v_add_u32 v{t0}, s{sT}, v{cAP}
v_lshl_add_u32 v{t1}, v{vL}, 2, s{sT}
""")
assert YC == 4 * XC
for fb in range(2):
    for j in range(3):
        a(f"ds_read_u16 v{M0 + 3 * fb + j}, v{t0} offset:{64 * fb + 256 * j}")
for j in range(3):
    a(f"ds_read_b32 v{DD + j}, v{t1} offset:{5120 + 256 * j}")
a(f"""
s_cmp_lg_u32 s{sMODE}, 0
s_cbranch_scc1 K_SLOW_INIT
s_waitcnt vmcnt(1)
""")
stamp(6)


def scatter(recs, sets, ks, masks):
    n = len(recs)
    for i in range(n):
        a(f"v_lshrrev_b32 v{RA + i}, 13, v{recs[i]}")
        a(f"v_and_or_b32 v{RA + i}, v{RA + i}, 14, v{vDS}")
    for i in range(n):
        a(f"ds_read_u16 v{RA + i}, v{RA + i} offset:{256 * sets[i]}")
    for i in range(n):
        a(f"v_lshrrev_b32 v{PAIR + 2 * i + 1}, 20, v{recs[i]}")
        a(f"v_add_u32 v{PAIR + 2 * i + 1}, v{vCB + sets[i]}, v{PAIR + 2 * i + 1}")
        a(f"v_and_b32 v{PAIR + 2 * i}, s{sT + 6}, v{recs[i]}")
    a("s_waitcnt lgkmcnt(0)")
    for i in range(n):
        a(f"v_add_lshl_u32 v{RA + i}, v{RA + i}, v{(vJA if ks[i] < 16 else vJX) + sets[i]}, 1")
    for i in range(n):
        a(f"s_mov_b64 exec, {masks[i]}")
        a(f"ds_write_b64 v{RA + i}, {v(PAIR + 2 * i, 2)} offset:{L_LS - 256 + 8 * ks[i]}")
    a("s_mov_b64 exec, -1")


scatter([REC1 + i for i in range(10)], [0, 0, 0, 0, 1, 1, 1, 1, 0, 1], [0, 1, 2, 3, 0, 1, 2, 3, 16, 16], [s(sM + 2 * i, 2) for i in range(10)])
a(f"""
s_cmp_lg_u64 {s(sR2, 2)}, 0
s_cbranch_scc1 K_R2
K_PROCESS:
s_sub_u32 s{sT + 1}, s{sX}, {BIAS}
s_lshl_b32 s{sT + 1}, s{sT + 1}, 1
v_add_u32 v{pS4}, s{sT + 1}, v{cS4}
v_add_u32 v{pE}, s{sT + 1}, v{cE}
v_add_u32 v{pS1}, s{sT + 1}, v{cS1}
s_waitcnt lgkmcnt(0)
s_barrier
""")
stamp(7)
idx_rd = lambda off: [f"ds_read_u16 v{vI + 2 * i}, v{pS4} offset:{L_LS + off + 64 * i}" for i in range(4)]
a(f"ds_read_b32 v{vEi}, v{pE} offset:{L_LS}")
emit(idx_rd(0))
a(f"""
ds_read_b32 v{vRec}, v{pS1} offset:{L_LS}
ds_write2_b32 v{vSZ}, v{vZ}, v{vZ} offset0:0 offset1:1
ds_write2_b32 v{vSZ}, v{vZ}, v{vZ} offset0:2 offset1:3
ds_write2_b32 v{vSZ}, v{vZ}, v{vZ} offset0:4 offset1:5
ds_write_b32 v{vSZ}, v{vZ} offset:24
s_setprio 3
""")
EAPOL = OPT.get("eapol", "")


def dma_bp(i):
    return [f"s_mov_b32 m0, s{sBF + i}", "s_nop 0", f"buffer_load_dwordx4 {v(vI + 2 * i, 2)}, {s(rBP, 4)}, 0 idxen offen sc1 lds"]


def dma_ea(reg):
    return [f"s_mov_b32 m0, s{sEAd}", f"s_xor_b32 s{sEAd}, s{sEAd}, 1024", f"buffer_load_dwordx4 {v(reg, 2)}, {s(rEA, 4)}, 0 idxen offen {EAPOL} lds"]


prep_addr = [f"v_mad_u32_u16 v{vPa}, v{vRec}, 6, v{vPc}", f"v_mad_u32_u16 v{vLa}, v{vRec}, 8, v{vLUTb} op_sel:[1,0,0,0]"]
prep_rd = [f"ds_read_u16_d16_hi v{vAs}, v{vPa} offset:{L_POS - 2}", f"ds_read_u16_d16_hi v{vBs}, v{vPa} offset:{L_POS}", f"ds_read_b128 {v(OH, 4)}, v{vLa}"]
prep_sa = f"v_mad_u32_u16 v{vSaddr}, v{vRec}, 4, v{vSb} op_sel:[1,0,0,0]"
prep_v = [f"v_fma_f32 v{OH + 2}, -v{vAs}, v{vKf}, v{OH + 2}", f"v_sub_f32 v{OH + 3}, v{OH + 3}, v{vBs}",
          f"v_cvt_pk_bf16_f32 v{vQ}, v{OH + 2}, v{OH + 3}",
          f"v_fma_f32 v{OH + 2}, v{OH + 2}, v{OH + 2}, v{vCf}", f"v_fmac_f32 v{OH + 2}, v{OH + 3}, v{OH + 3}", f"v_mul_f32 v{OH + 2}, s{sNL}, v{OH + 2}",
          f"v_cvt_pk_bf16_f32 v{OH + 1}, v{OH + 1}, v{OH + 2}"]
s_wr = f"ds_write_b32 v{vSaddr}, v{vQ}"
s_clr = f"ds_write_b32 v{vSaddr}, v{vZ}"
rd_frag = [f"ds_read_b128 {v(EA, 4)}, v{vEArd}", f"ds_read_b128 {v(BF0, 4)}, v{vBF}", f"ds_read_b128 {v(BF0 + 4, 4)}, v{vBF + 1}",
           f"ds_read_b128 {v(BF1, 4)}, v{vBF + 2}", f"ds_read_b128 {v(BF1 + 4, 4)}, v{vBF + 3}"]
rd_tr = [f"ds_read_b64_tr_b16 {v(SP + 2 * q, 2)}, v{vTR} offset:{q * 8 * SPR}" for q in range(4)]


def mf(d, x, y, c=None, n=4):
    op = "v_mfma_f32_32x32x16_bf16" if n == 4 else "v_mfma_f32_32x32x8_bf16"
    return f"{op} {v(d, 16)}, {v(x, n)}, {v(y, n)}, {'0' if c == 0 else v(d, 16)}"


a(f"""
v_add_u32 v{vEArd}, s{sEAd}, v{cEA}
s_waitcnt lgkmcnt(5)
""")
emit(dma_ea(vEi))
for i in range(4):
    emit(dma_bp(i))
a(f"""
s_setprio 0
s_cmp_eq_u32 s{sMODE}, 2
s_cbranch_scc1 K_NOCONST
s_mul_i32 s{sT}, s{sG}, 192
s_add_u32 s{sT}, s{sT}, {L_LUT}
v_add_u32 v{vLUTb}, s{sT}, v{vLUTb}
s_lshl_b32 s{sT}, s{sN0}, 7
v_add_u32 v{vOo}, s{sT}, v{vOo}
s_mul_i32 s{sT}, s{sN0}, 3
s_sub_u32 s{sT}, s{sT}, 1
v_add_lshl_u32 v{vPo}, v{cPo}, s{sT}, 1
s_add_u32 s{sSZ}, s{sSZ}, {127 + 625}
s_lshr_b32 s{sSZ}, s{sSZ}, 7
s_sub_u32 s{sSZ}, s{sSZ}, s{sN0}
v_lshl_or_b32 v{OB}, v{M0 + 1}, 16, v{M0}
v_lshl_or_b32 v{OB + 1}, v{W3}, 16, v{M0 + 2}
v_lshl_or_b32 v{OB + 2}, v{M0 + 4}, 16, v{M0 + 3}
v_lshl_or_b32 v{OB + 3}, v{W3 + 1}, 16, v{M0 + 5}
v_pk_mov_b32 {v(M0 + 6, 2)}, 0, 0
""")
for r in range(16):
    a(f"v_pk_mov_b32 {v(ACC0 + 2 * r, 2)}, 0, 0")
a(f"""
K_NOCONST:
s_waitcnt lgkmcnt(4)
""")
emit(prep_addr + [prep_sa])
a(f"""
v_mov_b32 v{vAs}, 0
v_mov_b32 v{vBs}, 0
""")
emit(prep_rd)
emit(idx_rd(256))
a(f"""
ds_read_b32 v{vEi}, v{pE} offset:{L_LS + 256}
ds_read_b32 v{vE2}, v{pE} offset:{L_LS + 512}
s_add_u32 s{sNT}, s{sNT}, 248
s_bfe_u32 s{sQ}, s{sNT}, 0x20006
s_lshr_b32 s{sNT}, s{sNT}, 8
s_mov_b32 s{sI2 + 1}, -1024
""")
for r in range(4):
    a(f"v_pk_mov_b32 {v(SP + 2 * r, 2)}, 0, 0")
    a(f"v_pk_mov_b32 {v(M1 + 2 * r, 2)}, 0, 0")
for r in range(2):
    a(f"v_pk_mov_b32 {v(T + 2 * r, 2)}, 0, 0")
EARLY1 = opt("early1", 1)
a("s_waitcnt lgkmcnt(0)")
if EARLY1:
    emit(dma_ea(vEi))
a(f"s_waitcnt vmcnt({EARLY1})")
emit(rd_frag)
emit(prep_v + [s_wr])
a(f"""
v_add_u32 v{vEArd}, 0x400, v{vEArd}
s_waitcnt lgkmcnt(5)
""")
a(mf(P0, EA, W4H, 0))
a("s_waitcnt lgkmcnt(1)")
a(mf(P0, BF0, PERM))
a(mf(P0, BF0 + 4, PERM + 4))
for i in range(4):
    emit(dma_bp(i))
a(mf(P0, OH, OB, n=2))
if not EARLY1:
    emit(dma_ea(vEi))
if opt("bench", 0):
    a(f"s_mov_b32 s{sNT}, {opt('bench', 0)}")
LATE_AT = opt("late", 4)
PRIO = opt("prio", 1)
stamp(8, 13)
if STAMPS:
    a(f"v_writelane_b32 v{vST}, s{sNT}, 15")
if PRIO:
    a("s_setprio 3")
a(f"""
s_mov_b32 s{sEV}, s{sNT}
s_mov_b32 s{sLA}, 1
s_cmp_ge_u32 s{sNT}, {LATE_AT + 1}
s_cbranch_scc1 K_LOOP
s_call_b64 {s(sRET, 2)}, K_LATE
s_cmp_eq_u32 s{sNT}, 0
s_cbranch_scc1 K_DRAINED
s_cmp_eq_u32 s{sNT}, 1
s_cbranch_scc1 K_TAIL
""")


def silu_slots(P, M, Mprev):
    sl = []
    for k in range(4):
        mdst = (Mprev + 6) if k == 0 else (M + 2 * (k - 1))
        pre = [f"v_cvt_pk_bf16_f32 v{mdst}, v{T}, v{T + 1}", f"v_cvt_pk_bf16_f32 v{mdst + 1}, v{T + 2}, v{T + 3}"]
        tr = [f"v_exp_f32 v{T + i}, v{P + 4 * k + i}" for i in range(4)]
        pk = [f"v_pk_add_f32 {v(T + 2 * i, 2)}, {v(T + 2 * i, 2)}, 1.0 op_sel_hi:[1,0]" for i in range(2)]
        sl.append(pre + tr + pk)
        tr = [f"v_rcp_f32 v{T + i}, v{T + i}" for i in range(4)]
        pk = [f"v_pk_mul_f32 {v(T + 2 * i, 2)}, {v(T + 2 * i, 2)}, {v(P + 4 * k + 2 * i, 2)}" for i in range(2)]
        sl.append(tr + pk)
    return sl


def emit_slot(before, mfma, after, slot):
    flt = lambda L: [x for x in L if not (opt("nodma", 0) and x.startswith("buffer_")) and not (opt("nods", 0) and x.startswith("ds_"))
                     and not (opt("novx", 0) and x.startswith("v_")) and not any(x.startswith(y) for y in OPT.get("drop", "@").split(","))]
    emit(flt(before))
    if mfma:
        a(mfma)
    emit(flt(after))
    emit(slot)


a.raw(".p2align 3")
a.label("K_LOOP")
SA = silu_slots(P0, M0, M1)
SB = silu_slots(P1, M1, M0)
GR1 = [f"ds_read_b32 v{vRec}, v{pS1} offset:{L_LS + 256}"] + idx_rd(512) + [f"ds_read_b32 v{vEi}, v{pE} offset:{L_LS + 768}"]
emit_slot([], mf(P1, BF1, PERM, 0), GR1, SA[0])
emit_slot([], mf(P1, BF1 + 4, PERM + 4), [f"v_lshl_add_u64 {v(pS1, 2)}, {v(pS1, 2)}, 0, {s(sI1, 2)}"], SA[1])
emit_slot([], mf(P1, EA, W4H + 4), [], SA[2])
emit_slot([], None, ["s_waitcnt lgkmcnt(0)"] + prep_addr, SA[3])
emit_slot([], mf(ACC1, M1, SP), [f"s_cmp_eq_u32 s{sNT}, s{sEV}", "s_cbranch_scc1 K_EVENT", "K_EVENT_BACK:"], SA[4])
emit_slot([], mf(P1, OH, OB + 2, n=2), [], SA[5])
emit_slot([], mf(ACC1, M1 + 4, SP + 4), ["s_waitcnt vmcnt(1)"] + rd_frag[:1] + prep_rd + rd_frag[1:] + rd_tr + [s_clr], SA[6])
emit_slot([], None, [prep_sa, f"v_lshl_add_u64 {v(pE, 2)}, {v(pE, 2)}, 0, {s(sI2, 2)}"], SA[7])
emit_slot([], None, [f"s_xor_b32 s{sI2 + 1}, s{sI2 + 1}, 0xfffff800", f"s_cmp_eq_u32 s{sNT}, s{sLA}", "s_cbranch_scc1 K_LATE_IN", "K_LATE_BACK:"], SB[0])
emit_slot(["s_waitcnt lgkmcnt(9)"], mf(P0, EA, W4H, 0), prep_v[:3], SB[1])
emit_slot([], None, ["s_waitcnt lgkmcnt(5)", s_wr] + dma_bp(0) + dma_bp(1) + dma_bp(2) + dma_bp(3) + dma_ea(vEi), SB[2])
emit_slot([], mf(P0, BF0, PERM), prep_v[3:], SB[3])
emit_slot([], mf(P0, BF0 + 4, PERM + 4), [], SB[4])
emit_slot(["s_waitcnt lgkmcnt(2)"], mf(ACC0, M0, SP), [], SB[5])
emit_slot([], mf(P0, OH, OB, n=2), [], SB[6])
emit_slot([f"s_sub_u32 s{sNT}, s{sNT}, 1", f"s_cmp_lg_u32 s{sNT}, 1"], mf(ACC0, M0 + 4, SP + 4), [], SB[7])
a("s_cbranch_scc1 K_LOOP")

a.label("K_TAIL")
if PRIO:
    a("s_setprio 0")


def tail_quad(tag, P, M, k, m1, m2):
    ex = [f"v_exp_f32 v{T + i}, v{P + 4 * k + i}" for i in range(4)] + [f"v_pk_add_f32 {v(T + 2 * i, 2)}, {v(T + 2 * i, 2)}, 1.0 op_sel_hi:[1,0]" for i in range(2)]
    rc = [f"v_rcp_f32 v{T + i}, v{T + i}" for i in range(4)] + [f"v_pk_mul_f32 {v(T + 2 * i, 2)}, {v(T + 2 * i, 2)}, {v(P + 4 * k + 2 * i, 2)}" for i in range(2)]
    rc += [f"v_cvt_pk_bf16_f32 v{M + 2 * k}, v{T}, v{T + 1}", f"v_cvt_pk_bf16_f32 v{M + 2 * k + 1}, v{T + 2}, v{T + 3}"]
    if k:
        a(f"s_cmp_lt_u32 s{sQ}, {k}")
    emit(m1)
    if k and m2:
        a(f"s_cbranch_scc1 {tag}{k}a")
    elif k:
        a(f"s_cbranch_scc1 {tag}{k}b")
    emit(ex)
    if k and m2:
        a.label(f"{tag}{k}a")
    emit(m2)
    if k and m2:
        a(f"s_cbranch_scc1 {tag}{k}b")
    emit(rc)
    if k:
        a.label(f"{tag}{k}b")


a(mf(P1, OH, OB + 2, 0, n=2))
a(f"""
v_cvt_pk_bf16_f32 v{M1 + 6}, v{T}, v{T + 1}
v_cvt_pk_bf16_f32 v{M1 + 7}, v{T + 2}, v{T + 3}
""")
tail_quad("K_TA", P0, M0, 0, ["s_nop 1"], [mf(ACC1, M1, SP)])
tail_quad("K_TA", P0, M0, 1, [mf(ACC1, M1 + 4, SP + 4)] + rd_tr, [mf(P1, BF1, PERM)])
tail_quad("K_TA", P0, M0, 2, [mf(P1, BF1 + 4, PERM + 4)], [mf(P1, EA, W4H + 4)])
tail_quad("K_TA", P0, M0, 3, [], [])
a("s_waitcnt lgkmcnt(0)")
a(mf(ACC0, M0, SP))
a("s_nop 6")
tail_quad("K_TB", P1, M1, 0, [], [mf(ACC0, M0 + 4, SP + 4)])
tail_quad("K_TB", P1, M1, 1, [], [])
tail_quad("K_TB", P1, M1, 2, ["s_nop 0", mf(ACC1, M1, SP)], [])
tail_quad("K_TB", P1, M1, 3, [], [])
a("s_nop 1")
a(mf(ACC1, M1 + 4, SP + 4))
a.label("K_DRAINED")
stamp(9, 14)
a(f"""
s_cmp_lg_u32 s{sMODE}, 0
s_cbranch_scc1 K_SLOW_NEXT
""")
a.label("K_EPI")
AF = M0
PD = BF0
for fb, ACC in enumerate((ACC0, ACC1)):
    for i in range(8):
        a(f"v_pk_mul_f32 {v(ACC + 2 * i, 2)}, {v(ACC + 2 * i, 2)}, {s(sLN2, 2)}")
    for i in range(8):
        a(f"v_cvt_pk_bf16_f32 v{AF + 8 * fb + i}, v{ACC + 2 * i}, v{ACC + 2 * i + 1}")
a("s_nop 1")
for st in range(4):
    a(mf(P0, AF + 4 * st, WH2 + 8 * st, 0 if st == 0 else None))
for st in range(4):
    a(mf(P1, AF + 4 * st, WH2 + 8 * st + 4, 0 if st == 0 else None))
for st in range(4):
    a(mf(PD, WX + 4 * st, AF + 4 * st, 0 if st == 0 else None))
a("s_waitcnt vmcnt(0)")
for j in range(3):
    a(f"v_and_b32 v{DD + 3 + j}, 0xffff0000, v{DD + j}")
    a(f"v_lshlrev_b32 v{DD + j}, 16, v{DD + j}")
for i in range(6):
    a(f"v_lshlrev_b32 v{HR + i}, 16, v{HR + i}")
a(f"v_lshlrev_b32 v{PR}, 16, v{PR}")
E_ = ACC0
for fb, P in enumerate((P0, P1)):
    for j in range(3):
        a(f"v_add_f32 v{DD + 3 * fb + j}, v{DD + 3 * fb + j}, v{P + 4 * j}")
for i in range(6):
    a(f"v_mul_f32 v{E_ + i}, s{sNL}, v{DD + i}")
for i in range(6):
    a(f"v_exp_f32 v{E_ + i}, v{E_ + i}")
for i in range(6):
    a(f"v_add_f32 v{E_ + i}, 1.0, v{E_ + i}")
for i in range(6):
    a(f"v_rcp_f32 v{E_ + i}, v{E_ + i}")
for i in range(6):
    a(f"v_fmac_f32 v{HR + i}, v{DD + i}, v{E_ + i}")
for i in range(3):
    a(f"v_cvt_pk_bf16_f32 v{HR + i}, v{HR + i}, v{HR + 3 + i}")
a(f"""
v_add_f32 v{PR}, v{PR}, v{PD}
s_mov_b32 s{sT}, 1280000
v_cvt_pk_bf16_f32 v{PR}, v{PR}, v{PR}
""")
for j in range(2):
    a(f"buffer_store_short v{HR + j}, v{vOo}, {s(rOUT, 4)}, 0 offen offset:{256 * j}")
    a(f"buffer_store_short_d16_hi v{HR + j}, v{vOo}, {s(rOUT, 4)}, 0 offen offset:{256 * j + 64}")
a(f"""
s_cmp_eq_u32 s{sSZ}, 5
s_mov_b32 exec_hi, 0
s_cbranch_scc0 K_FOUR
buffer_store_short v{HR + 2}, v{vOo}, {s(rOUT, 4)}, 0 offen offset:512
buffer_store_short_d16_hi v{HR + 2}, v{vOo}, {s(rOUT, 4)}, 0 offen offset:576
K_FOUR:
s_movk_i32 s{sT + 1}, 0x7777
s_cselect_b32 s{sT + 1}, 0x77777, s{sT + 1}
s_lshl_b32 exec_lo, s{sT + 1}, 1
buffer_store_short v{PR}, v{vPo}, {s(rOUT, 4)}, s{sT} offen
""")
if STAMPS:
    a(f"v_writelane_b32 v{vST}, s{sT + 7}, 10")
    a("s_waitcnt vmcnt(0)")
    stamp(11)
    a(f"""
    s_mov_b64 exec, 0xffff
    s_lshl_b32 s100, s2, 4
    s_add_u32 s100, s100, s{sW}
    s_lshl_b32 s100, s100, 6
    s_add_u32 s100, s100, {ST_OFF}
    v_lshl_add_u32 v{vST - 1}, v{vL}, 2, s100
    global_store_dword v{vST - 1}, v{vST}, {s(sWS, 2)}
    """)
a.label("K_END")
a("s_endpgm")

gemm_rd = []
for st in range(4):
    gemm_rd.append(f"ds_read_b128 {v(HB + 4 * st, 4)}, v{vHr + st}")
    for u in range(2):
        gemm_rd.append(f"ds_read_b64_tr_b16 {v(WA + 4 * st + 2 * u, 2)}, v{vWr} offset:{(16 * st + 4 * u) * 128}")
a.label("K_BTASK")
a("s_waitcnt lgkmcnt(2)")
emit(gemm_rd)
a(f"""
s_waitcnt lgkmcnt(12)
s_barrier
s_call_b64 {s(sRET, 2)}, K_GEMM2
""")
srd(rX, sWS, 1280000, BP_OFF)
a(f"s_lshl_b32 s{sT}, s{sN0}, 7")
for r in range(10):
    a(f"buffer_store_dword v{G0 + r}, v{vGo}, {s(rX, 4)}, s{sT} offen offset:{256 * r} sc1")
stamp(2)
a("s_branch K_PUBLISH")
a.label("K_GEMM")
emit(gemm_rd)
a.label("K_GEMM2")
for st in range(4):
    a(f"s_waitcnt lgkmcnt({9 - st})")
    a(mf(G0, HB + 4 * st, WA + 4 * st, 0 if st == 0 else None))
    for u in range(2):
        a(f"ds_read_b64_tr_b16 {v(WA + 16 + 4 * st + 2 * u, 2)}, v{vWr} offset:{(16 * st + 4 * u) * 128 + 64}")
for st in range(4):
    a(f"s_waitcnt lgkmcnt({6 - 2 * st})")
    a(mf(G1, HB + 4 * st, WA + 16 + 4 * st, 0 if st == 0 else None))
a("s_nop 6")
for G in (G0, G1):
    for i in range(5):
        a(f"v_pk_mul_f32 {v(G + 2 * i, 2)}, {v(G + 2 * i, 2)}, {s(sLN2, 2)}")
for r in range(10):
    a(f"v_cvt_pk_bf16_f32 v{G0 + r}, v{G0 + r}, v{G1 + r}")
a(f"s_setpc_b64 {s(sRET, 2)}")

a(f"""
K_MKTAG:
s_memrealtime {s(sT, 2)}
s_waitcnt lgkmcnt(0)
s_or_b32 s{sT}, s{sT}, 1
v_mov_b32 v{x0}, s{sT}
v_mov_b32 v{x0 + 1}, s{sT + 1}
s_mov_b64 exec, 1
global_store_dwordx2 v{vZ}, {v(x0, 2)}, {s(sDBG, 2)} sc1
s_mov_b64 exec, -1
s_branch K_TOUCHED
K_TOUCH:
s_mov_b32 s{sT + 2}, 60000
s_cmp_eq_u32 s{sW}, 6
s_cselect_b32 s{rX}, s{sWE}, s{sPOS}
s_cselect_b32 s{rX + 1}, s{sWE + 1}, s{sPOS + 1}
s_cselect_b32 s{rX + 2}, 18560, s{sT + 2}
s_cmp_eq_u32 s{sW}, 7
s_cselect_b32 s{rX}, s{sWH}, s{rX}
s_cselect_b32 s{rX + 1}, s{sWH + 1}, s{rX + 1}
s_cselect_b32 s{rX + 2}, 16384, s{rX + 2}
s_mov_b32 s{rX + 3}, 0x20000
s_lshl_b32 s{sT}, s{sT + 7}, 11
v_lshlrev_b32 v{x0 + 5}, 7, v{vL}
s_mov_b64 exec, 0xffff
buffer_load_dword v{vPa}, v{x0 + 5}, {s(rX, 4)}, s{sT} offen
s_mov_b64 exec, -1
s_branch K_TOUCHED
""")

a(f"""
K_NONCE:
s_mov_b32 s{sT}, 0
K_NONCE_L:
global_load_dwordx2 {v(t0, 2)}, v{vZ}, {s(sDBG, 2)} sc1
s_add_u32 s{sT}, s{sT}, 1
s_waitcnt vmcnt(0)
v_readfirstlane_b32 s{sTAG}, v{t0}
v_readfirstlane_b32 s{sTAG + 1}, v{t0 + 1}
s_cmp_gt_u32 s{sT}, 0x200000
s_cbranch_scc1 K_END
s_cmp_eq_u32 s{sTAG}, 0
s_cbranch_scc1 K_NONCE_L
s_branch K_NONCED
K_REPOLL:
{poll_ld[0]}
{poll_ld[1]}
s_cmp_lt_u32 s{sT + 7}, 0x200000
s_cbranch_scc1 K_POLL
s_endpgm
K_LONG:
global_load_dword v{REC1 + 10}, v{vAX}, {s(sWS, 2)} offset:80 sc1
global_load_dword v{REC1 + 11}, v{vAX + 1}, {s(sWS, 2)} offset:80 sc1
v_cmp_lt_i32 vcc, 0x60, v{t0}
s_mov_b64 {s(sR2 + 2, 2)}, vcc
v_cmp_lt_i32 vcc, 0x80, v{t0}
s_cbranch_vccz K_LONG_BACK
v_mov_b32 v{t1}, 1
ds_write_b32 v{vZ}, v{t1} offset:{L_FLAG}
s_branch K_LONG_BACK
K_EVENT:
s_cmp_eq_u32 s{sLA}, 1
s_cbranch_scc0 K_EVENT2
""")
emit(dma_ea(vE2))
a(f"""
s_cmp_gt_u32 s{sNT}, {LATE_AT}
s_cselect_b32 s{sLA}, {LATE_AT}, 0
s_mov_b32 s{sEV}, {opt("p1at", 2)}
s_branch K_EVENT_BACK
K_EVENT2:
{"s_setprio 1" if PRIO else ""}
s_branch K_EVENT_BACK
K_LATE_IN:
s_call_b64 {s(sRET, 2)}, K_LATE
{"s_setprio 2" if PRIO else ""}
s_branch K_LATE_BACK
K_LATE:
""")
for j in range(3):
    for fb in range(2):
        a(f"buffer_load_ushort v{HR + 3 * fb + j}, v{vOo}, {s(rH, 4)}, 0 offen offset:{64 * fb + 256 * j}")
a(f"buffer_load_ushort v{PR}, v{vPo}, {s(rPOS, 4)}, 0 offen")
a(f"s_setpc_b64 {s(sRET, 2)}")
a(f"""
K_R2:
v_cmp_lt_i32 {s(sM, 2)}, 64, v{vRX}
v_cmp_lt_i32 {s(sM + 2, 2)}, 64, v{vRX + 1}
""")
scatter([REC1 + 10, REC1 + 11], [0, 1], [20, 20], [s(sM, 2), s(sM + 2, 2)])
a(f"""
s_cmp_eq_u64 {s(sR2 + 2, 2)}, 0
s_cbranch_scc1 K_PROCESS
global_load_dword v{REC1}, v{vAX}, {s(sWS, 2)} offset:96 sc1
global_load_dword v{REC1 + 1}, v{vAX + 1}, {s(sWS, 2)} offset:96 sc1
global_load_dword v{REC1 + 2}, v{vAX}, {s(sWS, 2)} offset:112 sc1
global_load_dword v{REC1 + 3}, v{vAX + 1}, {s(sWS, 2)} offset:112 sc1
v_subrev_u32 v{vRX}, 64, v{vRX}
v_subrev_u32 v{vRX + 1}, 64, v{vRX + 1}
v_cmp_lt_i32 {s(sM, 2)}, 16, v{vRX}
v_cmp_lt_i32 {s(sM + 2, 2)}, 16, v{vRX + 1}
v_cmp_lt_i32 {s(sM + 4, 2)}, 32, v{vRX}
v_cmp_lt_i32 {s(sM + 6, 2)}, 32, v{vRX + 1}
s_waitcnt vmcnt(0)
""")
scatter([REC1 + i for i in range(4)], [0, 1, 0, 1], [24, 24, 28, 28], [s(sM + 2 * i, 2) for i in range(4)])
a("s_branch K_PROCESS")

a(f"""
K_SLOW_INIT:
s_mov_b32 s{sC}, 0
s_branch K_SLOW_CHUNK
K_SLOW_NEXT:
s_waitcnt vmcnt(0) lgkmcnt(0)
s_mov_b32 s{sMODE}, 2
s_add_u32 s{sJ}, s{sJ}, {4 * YC}
s_cmp_lt_u32 s{sJ}, s{sEND}
s_cbranch_scc1 K_SLOW_ROUND
s_add_u32 s{sC}, s{sC}, 1
s_cmp_ge_u32 s{sC}, 256
s_cbranch_scc1 K_EPI
K_SLOW_CHUNK:
s_lshl_b32 s{sT}, s{sC}, 8
s_add_u32 s{sT}, s{sT}, s{sBIN}
s_lshl_b32 s{sT}, s{sT}, 5
s_add_u32 s{sT}, s{sT}, {OFF_OFF}
v_mov_b32 v{t0}, s{sT}
global_load_dword v{t1}, v{t0}, {s(sWS, 2)} sc1
global_load_dword v{t2}, v{t0}, {s(sWS, 2)} offset:24 sc1
s_waitcnt vmcnt(0)
v_readfirstlane_b32 s{sJ}, v{t1}
v_readfirstlane_b32 s{sEND}, v{t2}
s_and_b32 s{sJ}, s{sJ}, 0xffff
s_and_b32 s{sEND}, s{sEND}, 0xffff
K_SLOW_ROUND:
s_waitcnt lgkmcnt(0)
s_barrier
""")
init_lists(P1)
a(f"""
s_mul_i32 s{sT + 2}, s{sC}, 2500
s_mul_i32 s{sT + 3}, s{sC}, {RSTR}
v_lshl_add_u32 v{t0}, v0, 2, s{sJ}
s_add_u32 s{sT + 4}, s{sJ}, {4 * YC}
s_min_u32 s{sT + 4}, s{sT + 4}, s{sEND}
v_cmp_gt_u32 vcc, s{sT + 4}, v{t0}
v_min_u32 v{t0}, {RSTR - 4}, v{t0}
v_add_u32 v{t0}, s{sT + 3}, v{t0}
global_load_dword v{REC1}, v{t0}, {s(sWS, 2)} sc1
s_lshl_b32 s{sT}, s{sW}, 11
s_add_u32 s{sEAd}, s{sT}, {L_EA}
s_waitcnt vmcnt(0) lgkmcnt(0)
s_barrier
v_lshrrev_b32 v{t0}, 13, v{REC1}
v_and_b32 v{t0}, 12, v{t0}
v_bfe_u32 v{t1}, v{REC1}, 14, 1
v_lshlrev_b32 v{t1}, 4, v{t1}
v_lshlrev_b32 v{t2}, v{t1}, 4
v_lshrrev_b32 v{RA + 1}, 20, v{REC1}
v_add_u32 v{RA + 1}, s{sT + 2}, v{RA + 1}
v_and_b32 v{RA}, s{sT + 6}, v{REC1}
s_mov_b64 exec, vcc
ds_add_rtn_u32 v{t0}, v{t0}, v{t2} offset:{L_CNT}
s_waitcnt lgkmcnt(0)
v_bfe_u32 v{t0}, v{t0}, v{t1}, 16
v_subrev_u32 v{t0}, {RSTR}, v{t0}
v_lshlrev_b32 v{t0}, 1, v{t0}
ds_write_b64 v{t0}, {v(RA, 2)} offset:{L_LS - 256}
s_mov_b64 exec, -1
s_waitcnt lgkmcnt(0)
s_barrier
ds_read_u16 v{t1}, v{cA2} offset:{L_CNT}
s_lshl_b32 s{sT}, s{sW}, 3
s_mul_i32 s{sX}, s{sW}, {LSTR // 2}
s_add_u32 s{sX}, s{sX}, {BIAS + 4 * XC}
s_waitcnt lgkmcnt(0)
v_readlane_b32 s{sNT}, v{t1}, s{sT}
s_sub_u32 s{sNT}, s{sNT}, s{sX}
s_lshl_b32 s{sNT}, s{sNT}, 1
s_branch K_PROCESS
""")

a.raw('.section .rodata,"a"')
a.raw(".p2align 6")
a.raw(f".amdhsa_kernel {NAME}")
a.raw(f"  .amdhsa_next_free_vgpr {NVGPR}")
a.raw("  .amdhsa_next_free_sgpr 102")
a.raw(f"  .amdhsa_accum_offset {NVGPR}")
a.raw("  .amdhsa_group_segment_fixed_size 0")
a.raw("  .amdhsa_kernarg_size 88")
a.raw("  .amdhsa_user_sgpr_count 2")
a.raw("  .amdhsa_user_sgpr_kernarg_segment_ptr 1")
a.raw("  .amdhsa_system_sgpr_workgroup_id_x 1")
a.raw("  .amdhsa_float_denorm_mode_32 3")
a.raw(".end_amdhsa_kernel")

probs = check_hazards([l for l in a.lines if not l.startswith(";") and not l.startswith(" ")])
for p in probs:
    print(p, file=sys.stderr)
open(sys.argv[1], "w").write(a.text())
print(f"wrote {sys.argv[1]}: {len(a.lines)} lines, {len(probs)} hazards, LDS {LDS}", file=sys.stderr)
```

```python
import sys
src, dst, kern, idx, mode = sys.argv[1], sys.argv[2], int(sys.argv[3]), int(sys.argv[4]), sys.argv[5]
s = open(src).read()
lines = s.split('\n')
i = [k for k, l in enumerate(lines) if l.startswith('; @launch')]
if 'kernel=' not in lines[i[0]]:
    lines[i[0]] = lines[i[0]].replace('@launch', '@launch kernel=standalone__cheap_equivariant_egnn__graph_kernel')
lines[i[-1] + 1:i[-1] + 1] = ['; @launch kernel=diag_kernel grid=(1,1,1) block=(64,1,1) lds=0']
ST = 10 << 20
base0 = int(sys.argv[6]) if len(sys.argv) > 6 else 0
off = ST + (kern << 19) + idx * 4
diff = mode.startswith('diff')
if diff:
    _, idx2, sh = mode.split(':'); idx2 = int(idx2); sh = int(sh)
body = f"""
.globl diag_kernel
.p2align 8
.type diag_kernel,@function
diag_kernel:
    s_memrealtime s[20:21]
    s_cmp_lg_u32 s2, 0
    s_cbranch_scc1 DG_END
    s_load_dwordx2 s[4:5], s[0:1], 80
    v_lshrrev_b32 v1, 3, v0
    v_and_b32 v2, 7, v0
    v_lshl_add_u32 v1, v1, 4, v2
    v_lshlrev_b32 v1, 6, v1
    v_add_u32 v2, {ST + (base0 << 19)}, v1
    v_add_u32 v3, {off}, v1
    v_mov_b32 v4, -1
    v_mov_b32 v5, 0
    v_mov_b32 v6, -1
    v_mov_b32 v9, 0
    s_mov_b32 s6, 0
    s_waitcnt lgkmcnt(0)
DG_L:
    global_load_dword v7, v2, s[4:5]
    global_load_dword v8, v3, s[4:5]
    {"global_load_dword v10, v3, s[4:5] offset:%d" % (4 * (idx2 - idx) if diff else 0) if diff else ""}
    s_waitcnt vmcnt(0)
    {"v_sub_u32 v8, v8, v10" if diff else ""}
    v_min_u32 v4, v4, v7
    v_max_u32 v5, v5, v8
    v_min_u32 v6, v6, v8
    v_add_u32 v9, v9, v8
    v_add_u32 v2, 8192, v2
    v_add_u32 v3, 8192, v3
    s_add_u32 s6, s6, 1
    s_cmp_lt_u32 s6, 32
    s_cbranch_scc1 DG_L
    s_mov_b32 s6, 0
    s_mov_b32 s7, -1
    s_mov_b32 s8, 0
    s_mov_b32 s9, -1
    s_mov_b32 s10, 0
DG_R:
    s_nop 4
    v_readlane_b32 s11, v4, s6
    v_readlane_b32 s12, v5, s6
    v_readlane_b32 s13, v6, s6
    v_readlane_b32 s14, v9, s6
    s_nop 4
    s_min_u32 s7, s7, s11
    s_max_u32 s8, s8, s12
    s_min_u32 s9, s9, s13
    s_add_u32 s10, s10, s14
    s_add_u32 s6, s6, 1
    s_cmp_lt_u32 s6, 64
    s_cbranch_scc1 DG_R
    s_lshl_b32 s11, s7, 11
    {"" if diff else "s_sub_u32 s10, s10, s11"}
    s_lshr_b32 s10, s10, {11 + (sh if diff else 0)}
    s_sub_u32 s8, s8, s7
    s_sub_u32 s9, s9, s7
    s_sub_u32 s20, s20, s7
    s_sub_u32 s21, s20, s8
    s_mov_b32 s12, {'s20' if mode == 'self' else 's21' if mode == 'gap' else 's8' if mode == 'max' else 's9' if mode == 'min' else 's10' if mode == 'mean' or diff else '0'}
    s_lshl_b32 s12, s12, 3
    s_min_u32 s12, s12, 40000
    s_add_u32 s12, s12, 10000
    s_mov_b32 s6, 0
DG_S:
    s_memrealtime s[14:15]
    s_waitcnt lgkmcnt(0)
    s_sub_u32 s14, s14, s7
    s_add_u32 s6, s6, 1
    s_cmp_gt_u32 s6, 1000000
    s_cbranch_scc1 DG_END
    s_cmp_lt_u32 s14, s12
    s_cbranch_scc1 DG_S
DG_END:
    s_endpgm
.section .rodata,"a"
.p2align 6
.amdhsa_kernel diag_kernel
  .amdhsa_next_free_vgpr 16
  .amdhsa_next_free_sgpr 32
  .amdhsa_accum_offset 16
  .amdhsa_group_segment_fixed_size 0
  .amdhsa_kernarg_size 88
  .amdhsa_user_sgpr_count 2
  .amdhsa_user_sgpr_kernarg_segment_ptr 1
  .amdhsa_system_sgpr_workgroup_id_x 1
.end_amdhsa_kernel"""
t = '\n'.join(lines).replace('.section .rodata,"a"', body, 1)
open(dst, 'w').write(t)
```
